```python
import torch

def _softmax(x, axis=-1):
    return torch.softmax(x, dim=axis)
def _gelu(x):
    return torch.nn.functional.gelu(x, approximate="tanh")
def _silu(x):
    return torch.nn.functional.silu(x)
def _sigmoid(x):
    return torch.sigmoid(x)
def _layernorm(x, axis=-1, eps=1e-5):
    m = x.mean(dim=axis, keepdim=True)
    v = x.var(dim=axis, keepdim=True, unbiased=False)
    return (x - m) / torch.sqrt(v + eps)
def _scatter_add(tgt, idx, src, axis=0):
    return tgt.clone().index_add_(axis, idx, src)
def _segment_sum(src, seg, n):
    out = torch.zeros((n,) + src.shape[1:], dtype=src.dtype)
    return out.index_add_(0, seg, src)
def _pad(x, pw):
    flat = tuple(v for pair in reversed(pw) for v in pair)
    return torch.nn.functional.pad(x, flat)

kernel_name = 'sequential_preLN__linear_kernel_hedgehog__moe_arch_mod__prompt'

def setup_inputs():

    _w = (lambda a: (lambda t: t.to(torch.bfloat16) if t.is_floating_point() else t)(torch.as_tensor(a)))
    def _A_setup():
        B, S, D, H = 1, 2048, 640, 32
        Dh = D // H
        return {
            "x": _w((lambda *s: torch.randn(*s, dtype=torch.bfloat16) * 0.05)(B, S, D)),
            "wqkv": _w((lambda *s: torch.randn(*s, dtype=torch.bfloat16) * 0.2)(D, 3 * D)),
            "w_phi": _w((lambda *s: torch.randn(*s, dtype=torch.bfloat16) * 0.2)(H, Dh, Dh) * (Dh ** -0.5)),
            "wo": _w((lambda *s: torch.randn(*s, dtype=torch.bfloat16) * 0.05)(D, D)),
        }
    _A_in = _A_setup()

    def _B_setup():
        B, S, D, F, C = 1, 2048, 640, 1536, 8
        return {
            "x": _w((lambda *s: torch.randn(*s, dtype=torch.bfloat16) * 0.05)(B, S, D)),
            "w_r": _w((lambda *s: torch.randn(*s, dtype=torch.bfloat16) * 0.05)(D)),
            "w_gate": _w((lambda *s: torch.randn(*s, dtype=torch.bfloat16) * 0.05)(D, F)),
            "w_up": _w((lambda *s: torch.randn(*s, dtype=torch.bfloat16) * 0.05)(D, F)),
            "w_down": _w((lambda *s: torch.randn(*s, dtype=torch.bfloat16) * 0.05)(F, D)),
        }
    _B_in = _B_setup()

    return {
        "A_x": _A_in["x"],
        "A_wqkv": _A_in["wqkv"],
        "A_w_phi": _A_in["w_phi"],
        "A_wo": _A_in["wo"],
        "B_x": _B_in["x"],
        "B_w_r": _B_in["w_r"],
        "B_w_gate": _B_in["w_gate"],
        "B_w_up": _B_in["w_up"],
        "B_w_down": _B_in["w_down"],
    }

def reference(A_x, A_wqkv, A_w_phi, A_wo, B_x, B_w_r, B_w_gate, B_w_up, B_w_down):
    def _A_ref(x, wqkv, w_phi, wo):
        B, S, D = x.shape
        H = 32; Dh = D // H
        qkv = (lambda x, *d: x.permute(*d))((x @ wqkv).reshape(B, S, 3, H, Dh), 2, 0, 3, 1, 4)
        q, k, v = qkv[0], qkv[1], qkv[2]
        pq = torch.einsum("bhsd,hdf->bhsf", q, w_phi)
        pk = torch.einsum("bhsd,hdf->bhsf", k, w_phi)
        phi_q = torch.concatenate([_softmax(pq, axis=-1), _softmax(-pq, axis=-1)], axis=-1)
        phi_k = torch.concatenate([_softmax(pk, axis=-1), _softmax(-pk, axis=-1)], axis=-1)
        kv = torch.einsum("bhsf,bhsd->bhfd", phi_k, v)
        z  = torch.einsum("bhsf->bhf", phi_k)
        num = torch.einsum("bhqf,bhfd->bhqd", phi_q, kv)
        den = torch.einsum("bhqf,bhf->bhq", phi_q, z)[..., None] + 1e-6
        o = num / den
        return (lambda x, *d: x.permute(*d))(o, 0, 2, 1, 3).reshape(B, S, D) @ wo

    def _B_ref(x, w_r, w_gate, w_up, w_down):
        B, S, D = x.shape
        C = 8
        r = x @ w_r
        idx = torch.argsort(-r, axis=-1)[:, :C]
        idx_e = (lambda x, n, axis: torch.repeat_interleave(x, n, dim=axis))(idx.reshape(B, C, 1), D, axis=2)
        x_sel = (lambda x, i, axis: torch.take_along_dim(x, i, dim=axis))(x, idx_e, axis=1)
        g = _silu(x_sel @ w_gate)
        u = x_sel @ w_up
        y = (g * u) @ w_down
        r_sel = _sigmoid((lambda x, i, axis: torch.take_along_dim(x, i, dim=axis))(r, idx, axis=1))
        y = y * r_sel.reshape(B, C, 1)
        b_off = (torch.arange(B) * S).reshape(B, 1)
        flat_idx = (idx + b_off).reshape(B * C)
        zero = (x * 0.0).reshape(B * S, D)
        upd = _scatter_add(zero, flat_idx, y.reshape(B * C, D), axis=0)
        return x + upd.reshape(B, S, D)

    x = A_x
    h = x + _A_ref(_layernorm(x, axis=-1), A_wqkv, A_w_phi, A_wo)
    h2 = h + _B_ref(_layernorm(h, axis=-1), B_w_r, B_w_gate, B_w_up, B_w_down)
    return h2
```

```python
import subprocess, re, tempfile, os
PROMO = ("v_mov_b32", "v_add_f32", "v_sub_f32", "v_mul_f32", "v_max_f32", "v_min_f32", "v_max_u32", "v_min_u32", "v_and_b32", "v_or_b32", "v_xor_b32",
         "v_lshlrev_b32", "v_lshrrev_b32", "v_ashrrev_i32", "v_add_u32", "v_sub_u32", "v_subrev_u32", "v_exp_f32", "v_rcp_f32", "v_sqrt_f32",
         "v_cndmask_b32", "v_not_b32", "v_mul_u32_u24", "v_dot2c_f32_bf16", "v_cmp_eq_u32", "v_cmp_ne_u32", "v_cmp_lt_u32", "v_cmp_le_u32", "v_cmp_gt_u32")
def sizes(lines, pre):
    src = '.amdgcn_target "amdgcn-amd-amdhsa--gfx950"\n.text\n' + pre + ":\n" + "\n".join(lines) + "\n"
    r = subprocess.run(["llvm-mc", "-triple=amdgcn-amd-amdhsa", "-mcpu=gfx950", "-show-encoding"], input=src, capture_output=True, text=True)
    assert r.returncode == 0, r.stderr[:2000]
    enc = [len(m.group(1).split(",")) for m in re.finditer(r"; encoding: \[([^\]]*)\]", r.stdout)]
    out = []; k = 0
    for l in lines:
        t = l.strip()
        if not t or t.endswith(":") or t.startswith((".", ";")): out.append(0)
        else: out.append(enc[k]); k += 1
    assert k == len(enc)
    return out
def fix(lines, pre, minrun=6):
    sz = sizes(lines, pre)
    out = []; osz = []; off = 0; npro = npad = 0
    isv = lambda l: l.strip().startswith("v_") and not l.strip().startswith("v_mfma")
    for i, l in enumerate(lines):
        if sz[i] == 8 and off % 8 == 4 and isv(l):
            run = 0
            for j in range(i, len(lines)):
                if sz[j] == 4: break
                if sz[j] == 8 and isv(lines[j]): run += 1
            done = False
            for j in range(len(out) - 1, -1, -1):
                if osz[j] == 0: continue
                if osz[j] == 8:
                    if isv(out[j]): break
                    continue
                mn = out[j].split()[0]
                if mn in PROMO:
                    out[j] = out[j].replace(mn, mn + "_e64", 1); osz[j] = 8; off += 4; npro += 1; done = True
                    break
                if len(out) - j > 12: break
            if not done and run >= minrun:
                out.append("    s_nop 0"); osz.append(4); off += 4; npad += 1
        out.append(l); osz.append(sz[i]); off += sz[i]
    return out, npro, npad
```

```python
NAME = "sequential_preLN__linear_kernel_hedgehog__moe_arch_mod__prompt"
KN = NAME + "_kernel"

class Asm:
    def __init__(self):
        self.lines = []
        self.nlab = 0
    def __call__(self, s=""):
        for l in s.split("\n"):
            l = l.strip()
            if l == "": continue
            self.lines.append(l if l.endswith(":") else "    " + l)
    def lab(self, base="L"):
        self.nlab += 1
        return f"{base}_{self.nlab}"
    def text(self):
        return "\n".join(self.lines) + "\n"

def srd(a, d, b, nbytes):
    if d != b:
        a(f"s_mov_b32 s{d}, s{b}")
    a(f"s_and_b32 s{d+1}, s{b+1}, 0xffff")
    a(f"s_mov_b32 s{d+2}, {nbytes}")
    a(f"s_mov_b32 s{d+3}, 0x20000")

def wrap(body, grid, block, lds, vgpr=256, accum=256, sgpr=102, header="", kname=KN):
    return f"""{header}; @launch grid=({grid},1,1) block=({block},1,1) lds={lds}
.amdgcn_target "amdgcn-amd-amdhsa--gfx950"
.text
.globl {kname}
.p2align 8
.type {kname},@function
{kname}:
{body}
.section .rodata,"a"
.p2align 6
.amdhsa_kernel {kname}
  .amdhsa_next_free_vgpr {vgpr}
  .amdhsa_next_free_sgpr {sgpr}
  .amdhsa_accum_offset {accum}
  .amdhsa_group_segment_fixed_size 0
  .amdhsa_kernarg_size 96
  .amdhsa_user_sgpr_count 2
  .amdhsa_user_sgpr_kernarg_segment_ptr 1
  .amdhsa_system_sgpr_workgroup_id_x 1
.end_amdhsa_kernel
"""
```

```python
import re
REG = re.compile(r'(?<![\w.])([vsa])\[(\d+):(\d+)\]|(?<![\w.\[])([vsa])(\d+)(?![\w\[])|(?<![\w.])(vcc_lo|vcc_hi|vcc|exec_lo|exec_hi|exec|m0)(?![\w])')
TRANS = ("v_exp_f", "v_log_f", "v_rcp_", "v_rsq_f", "v_sqrt_f", "v_sin_f", "v_cos_f")

def regs(tok):
    out = set()
    for m in REG.finditer(tok):
        if m.group(1): out |= {(m.group(1), i) for i in range(int(m.group(2)), int(m.group(3)) + 1)}
        elif m.group(4): out.add((m.group(4), int(m.group(5))))
        else:
            n = m.group(6)
            if n.startswith("vcc"): out |= {("s", "vcc")}
            elif n.startswith("exec"): out |= {("s", "exec")}
            else: out.add(("s", "m0"))
    return out

def split_ops(rest):
    ops, depth, cur = [], 0, ""
    for ch in rest:
        if ch in "[(": depth += 1
        if ch in "])": depth -= 1
        if ch == "," and depth == 0: ops.append(cur.strip()); cur = ""
        else: cur += ch
    if cur.strip(): ops.append(cur.strip())
    return ops

class I:
    def __init__(s, text):
        s.text = text
        t = text.split(";")[0].strip()
        s.label = t[:-1] if t.endswith(":") else None
        s.directive = t.startswith(".") and not s.label
        s.mn = "" if (s.label or s.directive or not t) else t.split()[0]
        rest = t[len(s.mn):].strip() if s.mn else ""
        ops = split_ops(rest)
        s.mods = ""
        if ops:
            parts = ops[-1].split(None, 1)
            if len(parts) == 2: ops[-1], s.mods = parts
        s.ops = ops
        mn = s.mn
        s.valu = mn.startswith("v_") and not mn.startswith("v_mfma")
        s.mfma = mn.startswith("v_mfma")
        s.ds = mn.startswith("ds_")
        s.vmem = mn.startswith(("buffer_", "global_"))
        s.salu = mn.startswith("s_")
        s.dpp = "_dpp" in mn
        s.sdwa_dst = "_sdwa" in mn and "dst_sel:" in s.mods and "dst_sel:DWORD" not in s.mods
        s.trans = mn.startswith(TRANS)
        s.dot = mn.startswith("v_dot")
        s.perml = mn.startswith("v_permlane")
        s.ws = 0 if (s.label or s.directive or not mn) else 1
        if mn == "s_nop": s.ws = int(ops[0], 0) + 1
        R = [regs(o) for o in ops]
        U = lambda l: set().union(*l) if l else set()
        s.w, s.r = set(), set()
        s.lds_dma = s.vmem and re.search(r'\blds\b', s.mods) is not None
        if s.mfma:
            s.w = R[0]; s.a = R[1] | R[2]; s.c = R[3]; s.r = s.a | s.c
            s.passes = 8 if "32x32" in mn else 4
        elif s.valu:
            if s.perml: s.w = R[0] | R[1]; s.r = set(s.w)
            elif mn.startswith(("v_add_co", "v_addc_co", "v_sub_co", "v_subb_co", "v_subrev_co", "v_div_scale")): s.w = R[0] | R[1]; s.r = U(R[2:])
            elif mn == "v_nop": pass
            else:
                s.w = R[0]; s.r = U(R[1:])
                if mn.startswith(("v_fmac", "v_dot2c", "v_writelane", "v_pk_fmac")) or s.dpp: s.r |= R[0]
                if mn.startswith("v_cmpx"): s.w |= {("s", "exec")}
        elif s.ds:
            if mn.startswith(("ds_read", "ds_bpermute", "ds_permute", "ds_swizzle")) or "_rtn" in mn: s.w = R[0]; s.r = U(R[1:])
            else: s.r = U(R)
        elif s.vmem:
            if "load" in mn and not s.lds_dma: s.w = R[0]; s.r = U(R[1:])
            else: s.r = U(R)
            s.wide_store = ("store" in mn and mn.endswith(("x3", "x4")))
            s.data = R[0] if mn.startswith("buffer_store") else set()
        elif s.salu:
            if mn.startswith(("s_cmp", "s_cbranch", "s_branch", "s_waitcnt", "s_barrier", "s_nop", "s_sleep", "s_endpgm", "s_setprio", "s_bitcmp")): s.r = U(R)
            else:
                s.w = R[0] if R else set(); s.r = U(R[1:])
                if "saveexec" in mn: s.w |= {("s", "exec")}
        s.vw = {x for x in s.w if x[0] in "va"}; s.sw = s.w - s.vw
        s.vr = {x for x in s.r if x[0] in "va"}; s.sr = s.r - s.vr

def need(p, c):
    n = 0
    if p.mfma:
        t = p.passes
        if c.mfma:
            if p.w & c.a: n = max(n, t + 4)
            if p.w & c.c and not (p.w == c.c and p.mn == c.mn): n = max(n, t + 2)
            if p.w & c.w and not (p.w == c.c and p.mn == c.mn): n = max(n, t + 2)
        elif c.valu:
            if p.w & (c.vr | c.vw): n = max(n, t + 4)
            if p.c & c.vw: n = max(n, t - 1)
        elif c.ds or c.vmem:
            if p.w & (c.vr | c.vw): n = max(n, t + 4)
    if p.valu:
        if c.mfma and p.vw & c.r: n = max(n, 3 if p.dot else 2)
        if c.valu:
            if c.dpp and p.vw & c.vr: n = max(n, 2)
            if c.perml and p.vw & c.vr: n = max(n, 2)
            if c.mn.startswith(("v_readlane", "v_readfirstlane")) and p.vw & c.vr: n = max(n, 1)
            if p.trans and not c.trans and p.vw & c.vr: n = max(n, 1)
            if p.sdwa_dst and p.vw & (c.vr | c.vw): n = max(n, 1)
            if p.sw & c.sr: n = max(n, 4 if c.mn.startswith(("v_readlane", "v_writelane", "v_div_fmas")) else 2)
            if p.dot and p.vw & (c.vr | c.vw):
                same = c.mn == p.mn
                srcc = regs(c.ops[0]) if c.mn.startswith("v_dot2c") else (regs(c.ops[3]) if c.dot else set())
                ab = set().union(*[regs(o) for o in c.ops[1:3]]) if c.dot else set()
                if not (same and not (p.vw & ab)): n = max(n, 3)
            if ("s", "exec") in p.sw: n = max(n, 5 if c.dpp else 4)
        if (c.ds or c.vmem) and p.dot and p.vw & c.vr: n = max(n, 3)
        if (c.ds or c.vmem) and p.trans and p.vw & c.vr: n = max(n, 1)
        if c.vmem and p.sw & c.sr: n = max(n, 5)
        if c.mfma and ("s", "exec") in p.sw: n = max(n, 4)
    if p.vmem and getattr(p, "wide_store", False) and p.data & c.vw: n = max(n, 2 if (c.valu or c.mfma) else 1)
    if p.salu and ("s", "m0") in p.sw and c.vmem and c.lds_dma: n = max(n, 1)
    return n

def fix(lines, verbose=False):
    ins = [I(l.strip()) for l in lines]
    total = 0
    for _ in range(10):
        lab = {x.label: k for k, x in enumerate(ins) if x.label}
        br = {}
        for k, x in enumerate(ins):
            if x.mn.startswith(("s_cbranch", "s_branch")): br.setdefault(lab[x.ops[0]], []).append(k)
        def preds(k):
            out = []
            if k > 0 and ins[k - 1].mn not in ("s_branch", "s_endpgm"): out.append(k - 1)
            out += br.get(k, [])
            return out
        add = {}
        for k, c in enumerate(ins):
            if not (c.valu or c.mfma or c.ds or c.vmem): continue
            worst = 0
            stack = [(q, 0) for q in preds(k)]
            seen = {}
            while stack:
                q, d = stack.pop()
                if d >= 12 or seen.get(q, 99) <= d: continue
                seen[q] = d
                p = ins[q]
                if p.ws:
                    worst = max(worst, need(p, c) - d)
                d2 = d + p.ws + add.get(q, 0)
                stack += [(z, d2) for z in preds(q)]
            if worst > 0: add[k] = worst
        if not add: break
        new = []
        for k, x in enumerate(ins):
            if k in add:
                new.append(I(f"s_nop {add[k]-1}")); total += 1
                if verbose: print("nop", add[k], "before", x.text)
            new.append(x)
        ins = new
    return [(x.text if x.label else "    " + x.text) for x in ins], total
```

```python
import sys
from asmlib import Asm, NAME, KN, wrap
import hazard, align

OHD = 3072
OBLK = 4*OHD
OFF_P   = 0x10000
OFF_F   = OFF_P + 32*4*32*768
OFF_O   = OFF_F + 32*4*768
OFF_ST  = OFF_O + 32*8*OBLK
OFF_KEY = OFF_ST + 32*5*1024
OFF_CN  = OFF_KEY + 4096
OFF_CH  = OFF_CN + 256*1280
OFF_Y   = OFF_CH + 256*1280
OFF_HY  = OFF_Y + 160*48*64
WS_END  = OFF_HY + 48*128
OFF_STAMP = 16 << 20
SLOT = 20480
S = [i*SLOT for i in range(7)]
M_VX = 7*SLOT
M_WP = M_VX + 12288
M_SM = M_WP + 4096
L_FL  = M_SM
F_LAND, F_REL, F_PK, F_XR, F_ER, F_KR, F_PQ, F_WOR, F_WL, F_VS, F_OS = 0, 16, 31, 33, 34, 35, 36, 37, 38, 39, 40
L_MR  = M_SM + 1024
L_TOP = M_SM + 2048
L_SP  = M_VX
CH_SLOT = [0, 1, 2, 3, 4, 5, 6, 0, 1, 2, 4, 5, 6, 0, 1]
CH_TOFF = [1280]*5 + [2560]*5 + [0]*5
WSL = [2, 3, 4, 5, 0, 0, 1, 6]
S_PK, S_PQ, S_O, S_O2, S_HT = S[3], S[6], S[2], S[4], S[4]
LOG2E = 0x3fb8aa3b
SPIN = 1 << 16
STV = 0
DPPM = "row_mask:0xf bank_mask:0xf"

vL, vJ, vQ = 1, 2, 3
vWD = 4
vWR = 9
vFT, vF4 = 12, 13
XF, WB, AC, AC2 = 24, 104, 136, 168
PB, PP = 156, 168
EP, EN = 104, 124
vSC = 248
vW5 = 240

class G(Asm):
    def __init__(s, opt):
        super().__init__(); s.o = opt; s.slow = []; s.items = None
    def __call__(s, text=""):
        if not s.items: return super().__call__(text)
        for l in text.split("\n"):
            super().__call__(l)
            if s.items and l.strip().startswith("v_"):
                s.acc += 2 if l.strip().startswith(("v_exp", "v_mfma")) else 1
                if s.acc >= s.gap:
                    it = s.items; s.items = None; s.acc = 0
                    w = it.pop(0)()
                    while it and w == 0: w = it.pop(0)()
                    s.items = it
    def interleave(s, items, gap): s.items = items; s.gap = gap; s.acc = 0
    def drain(s):
        it = s.items or []; s.items = None
        for f in it: f()
    def srd(s, d, b, n):
        s(f"s_mov_b32 s{d}, s{b}\ns_and_b32 s{d+1}, s{b+1}, 0xffff\ns_mov_b32 s{d+2}, {n}\ns_mov_b32 s{d+3}, 0x20000")
    def lite(s, name):
        L = s.o.get("lite") or []
        if name in L: i = L.index(name); s(f"s_memtime s[{78+2*i}:{79+2*i}]")
    def stamp(s, n, name=None):
        if name: s.lite(name)
        if s.o.get("stamps") == 1 and not s.o.get("lite"):
            s(f"s_memrealtime s[98:99]\ns_memtime s[100:101]\ns_waitcnt lgkmcnt(0)\ns_mov_b32 s{76+n}, s98\ns_sub_u32 s100, s100, s94\nv_writelane_b32 v{STV}, s100, {n}")
    def end(s):
        s("s_branch L_stamps" if s.o.get("stamps") else "s_endpgm")
    def rnd(s, d, x):
        s(f"v_cvt_pk_bf16_f32 v{d}, 0, v{x}")
    def ln_scalars(s, sm, sq, nm, rs, t):
        s(f"v_mul_f32 v{sm}, 0xbacccccd, v{sm}\nv_mul_f32 v{sq}, 0x3acccccd, v{sq}")
        s(f"v_fma_f32 v{t}, -v{sm}, v{sm}, v{sq}\nv_max_f32 v{t}, 0, v{t}")
        s.rnd(t, t)
        s(f"v_add_f32 v{t}, 0x3727c5ac, v{t}")
        s.rnd(t, t)
        s(f"v_sqrt_f32 v{t}, v{t}")
        s.rnd(nm, sm); s.rnd(t, t)
        s(f"v_rcp_f32 v{rs}, v{t}")
    def fset_t(s, n): return f"ds_write_b32 v{vFT}, v{vFT} offset:{16*n}"
    def fget_t(s, n, vT): return f"ds_read_b32 v{vT}, v{vF4} offset:{16*n}"
    def fset(s, n): s(s.fset_t(n))
    def fwait(s, n, vT, own=False):
        L = s.lab("fw"); E = s.lab("fwe")
        s(f"s_mov_b32 s57, {SPIN*8}\n{L}:\nds_read_b32 v{vT}, v{vFT if own else vF4} offset:{16*n}\ns_waitcnt lgkmcnt(0)\nv_cmp_eq_u32 vcc, 0, v{vT}")
        s(f"s_cbranch_vccz {E}\ns_sub_u32 s57, s57, 1\ns_cbranch_scc0 {L}\n{E}:")
    def fcheck(s, n, vT):
        L = s.lab("fs"); R = s.lab("fr")
        s(f"v_cmp_eq_u32 vcc, 0, v{vT}\ns_cbranch_vccnz {L}\n{R}:")
        s.slow.append(lambda: (s(f"{L}:"), s.fwait(n, vT), s(f"s_branch {R}")))
    def flush_slow(s):
        sl = s.slow; s.slow = []
        for f in sl: f()

class Vm:
    def __init__(s, g, n=0): s.g = g; s.n = n
    def op(s, text):
        s.g(text); s.n += text.count("buffer_")
        return s.n
    def wait(s, idx, extra=""):
        assert 0 <= s.n - idx < 64
        s.g(f"s_waitcnt vmcnt({s.n - idx}){extra}")

class Lgkm:
    def __init__(s, g): s.g = g; s.n = 0; s.done = 0
    def op(s, text):
        k = text.count("ds_")
        if s.n + k - s.done > 15: s.wait(s.n + k - 15)
        s.g(text); s.n += k
        return s.n
    def wait(s, idx):
        if idx > s.done: s.g(f"s_waitcnt lgkmcnt({s.n - idx})"); s.done = idx

def tr2(r, va, o0, o1):
    return f"ds_read_b64_tr_b16 v[{r}:{r+1}], v{va} offset:{o0}\nds_read_b64_tr_b16 v[{r+2}:{r+3}], v{va} offset:{o1}"
def mfma16(d, a, b, first): return f"v_mfma_f32_16x16x32_bf16 v[{d}:{d+3}], v[{a}:{a+3}], v[{b}:{b+3}], " + ("0" if first else f"v[{d}:{d+3}]")
def mfma32(d, a, b, first): return f"v_mfma_f32_32x32x16_bf16 v[{d}:{d+15}], v[{a}:{a+3}], v[{b}:{b+3}], " + ("0" if first else f"v[{d}:{d+15}]")
def cvt(d, a): return f"v_cvt_pk_bf16_f32 v{d}, v{a}, v{a+1}"

def w_dma_addr(g):
    for i in range(5):
        g(f"v_add_u32 v14, {64*i}, v{vL}\nv_mul_u32_u24 v15, 6554, v14\nv_lshrrev_b32 v15, 16, v15")
        g(f"v_mul_u32_u24 v16, 10, v15\nv_sub_u32 v14, v14, v16")
        g("v_and_b32 v16, 0x13, v15\nv_and_b32 v17, 4, v15\nv_lshl_or_b32 v16, v17, 1, v16\nv_bfe_u32 v17, v15, 3, 1\nv_lshl_or_b32 v16, v17, 2, v16")
        g(f"v_mul_u32_u24 v16, 3840, v16\nv_lshl_add_u32 v{vWD+i}, v14, 4, v16")
        if 0 < i < 4: g(f"v_subrev_u32 v{vWD+i}, {1024*i}, v{vWD+i}")
def w_tr_addr(g):
    g(f"v_lshrrev_b32 v14, 5, v{vL}\nv_lshlrev_b32 v14, 4, v14\nv_bfe_u32 v15, v{vL}, 2, 3\nv_add_u32 v14, v14, v15")
    g(f"v_mul_u32_u24 v14, 160, v14\nv_and_b32 v15, 3, v{vL}\nv_mad_u32_u24 v{vWR}, v15, 40, v14")
    g(f"v_add_u32 v{vWR+1}, {3*SLOT}, v{vWR}\nv_add_u32 v{vWR+2}, {6*SLOT}, v{vWR}")
SK = [40, 41, 32, 33, 75]
def chunk_offsets(g):
    g("s_lshl_b32 s60, s7, 1\ns_add_u32 s60, s60, s6\ns_mul_i32 s61, s4, 160")
    for c in range(5):
        g(f"s_add_u32 s58, s60, {4*c}\ns_cmp_ge_u32 s58, 20\ns_cselect_b32 s59, 20, 0\ns_sub_u32 s58, s58, s59\ns_mul_i32 s58, s58, {32*3840}\ns_add_u32 s{SK[c]}, s58, s61")
def chunk_dma(c):
    so = f"s{SK[c%5]}"; pre = ""
    if CH_TOFF[c]: pre = f"s_add_u32 s67, {so}, {CH_TOFF[c]}\n"; so = "s67"
    pre = f"s_add_u32 m0, s62, {S[CH_SLOT[c]]}\n" + pre
    out = [(pre if i == 0 else "") + f"buffer_load_dwordx4 v{vWD+i}, s[12:15], {so} offen offset:{1024*i} lds" for i in range(4)]
    return out + [f"s_add_u32 m0, s62, {S[CH_SLOT[c]]+4096}\nbuffer_load_dwordx4 v{vWD+4}, s[12:15], {so} offen lds"]

def gemm(g, c0, nch, land, rel, ev=None, pre=None, D=6, NB=8, W=4, vC=14):
    ev = ev or {}
    lg = Lgkm(g); idx = {}; pend = {}; N = 20 * nch
    def rd(f):
        n, T = divmod(f, 5)
        if f % 20 == 0 and n // 4 in land:
            assert pend[n // 4] <= lg.done
            g.fcheck(F_LAND + c0 + n // 4, vC)
        b, off = divmod(S[CH_SLOT[c0 + n // 4]] + (n % 4) * 5120 + 8 * T, 3 * SLOT)
        idx[f] = lg.op(tr2(WB + 4 * (f % NB), vWR + b, off, off + 1280))
    for f in range(D): rd(f)
    if pre: pre()
    for f in range(N):
        if f + D < N: rd(f + D)
        if f % W == 0: lg.wait(idx[f + W - 1])
        n, T = divmod(f % 100, 5)
        g(mfma16((AC, AC2)[f // 100] + 4 * T, WB + 4 * (f % NB), XF + 4 * n, n == 0))
        if f % 20 == 8 and f // 20 + 1 in land: pend[f // 20 + 1] = lg.op(g.fget_t(F_LAND + c0 + f // 20 + 1, vC))
        if f % 20 == 16 and f // 20 in rel: lg.op(g.fset_t(F_REL + c0 + f // 20))
        if f in ev: ev[f](lg)
        g.lite(f"g{20*c0 + f}")

def phi_waddr(g, va):
    g(f"v_bfe_u32 v14, v{vL}, 2, 2\nv_mul_u32_u24 v14, 40, v14\nv_mul_u32_u24 v15, 800, v{vQ}\nv_add_u32 v14, v14, v15\nv_and_b32 v15, 3, v{vL}")
    g(f"v_cmp_eq_u32 vcc, v15, v{vQ}\nv_mov_b32 v15, 3200\nv_cndmask_b32 v14, v15, v14, vcc\nv_add_u32 v{va}, {M_WP}, v14")
def phi_wload(g, PW, va):
    g(f"v_mov_b32 v{PW+50}, 0\nv_mov_b32 v{PW+51}, 0\nv_mov_b32 v{PB+10}, 0\nv_mov_b32 v{PB+11}, 0")
    for T in range(5):
        for i in range(5): g(f"ds_read_b64_tr_b16 v[{PW+10*T+2*i}:{PW+10*T+2*i+1}], v{va} offset:{160*i + 8*T}")
        if T % 2 == 1: g("s_waitcnt lgkmcnt(5)")
def phi(g, PW, pk):
    todo = []
    for T in range(5):
        r = PW + 10*T; d = PP + 4*T
        for st in range(3):
            g(mfma16(d, r + 4*st, PB + 4*st, st == 0))
            if T >= 3:
                for _ in range(2): x = todo.pop(0); g.rnd(x, x)
        todo += list(range(d, d + 4))
    def mm(i, first=False):
        if first: g(f"v_max3_f32 v14, v{PP}, v{PP+1}, v{PP+2}\nv_min3_f32 v15, v{PP}, v{PP+1}, v{PP+2}")
        else: g(f"v_max3_f32 v14, v14, v{PP+i}, v{PP+i+1}\nv_min3_f32 v15, v15, v{PP+i}, v{PP+i+1}")
    mm(0, True)
    for i in (3, 5, 7, 9): mm(i)
    for x in todo: g.rnd(x, x)
    for i in (11, 13, 15, 17): mm(i)
    g(f"v_max_f32 v14, v14, v{PP+19}\nv_min_f32 v15, v15, v{PP+19}\nv_mul_f32 v14, s64, v14\nv_mul_f32 v16, s64, v15")
    g.lite("q2" if pk else "k2")
    if pk:
        for i in range(0, 20, 2):
            g(f"v_pk_fma_f32 v[{EP+i}:{EP+i+1}], v[{PP+i}:{PP+i+1}], s[64:65], v[14:15] op_sel_hi:[1,0,0] neg_lo:[0,0,1] neg_hi:[0,0,1]")
            g(f"v_pk_fma_f32 v[{EN+i}:{EN+i+1}], v[{PP+i}:{PP+i+1}], s[64:65], v[16:17] op_sel_hi:[1,0,0] neg_lo:[1,0,0] neg_hi:[1,0,0]")
    else:
        for i in range(20): g(f"v_fma_f32 v{EP+i}, v{PP+i}, s64, -v14\nv_fma_f32 v{EN+i}, -v{PP+i}, s64, v16")
    for i in range(40): g(f"v_exp_f32 v{EP+i}, v{EP+i}")
    g.lite("q3" if pk else "k3")
    if pk:
        g(f"v_pk_add_f32 v[14:15], v[{EP}:{EP+1}], v[{EP+2}:{EP+3}]\nv_pk_add_f32 v[16:17], v[{EN}:{EN+1}], v[{EN+2}:{EN+3}]")
        for i in range(4, 20, 2):
            g(f"v_pk_add_f32 v[14:15], v[14:15], v[{EP+i}:{EP+i+1}]\nv_pk_add_f32 v[16:17], v[16:17], v[{EN+i}:{EN+i+1}]")
        g("v_add_f32 v14, v14, v15\nv_add_f32 v16, v16, v17")
    else:
        g(f"v_add_f32 v14, v{EP}, v{EP+1}\nv_add_f32 v16, v{EN}, v{EN+1}")
        for i in range(2, 20): g(f"v_add_f32 v14, v14, v{EP+i}\nv_add_f32 v16, v16, v{EN+i}")
    g("v_rcp_f32 v14, v14\nv_rcp_f32 v16, v16")
    if pk:
        for i in range(0, 20, 2):
            g(f"v_pk_mul_f32 v[{EP+i}:{EP+i+1}], v[{EP+i}:{EP+i+1}], v[14:15] op_sel_hi:[1,0]\nv_pk_mul_f32 v[{EN+i}:{EN+i+1}], v[{EN+i}:{EN+i+1}], v[16:17] op_sel_hi:[1,0]")
    else:
        for i in range(20): g(f"v_mul_f32 v{EP+i}, v14, v{EP+i}\nv_mul_f32 v{EN+i}, v16, v{EN+i}")

def sort_consts(g):
    for k in range(3): g(f"v_bfe_u32 v{vSC+k}, v{vL}, {k}, 1\nv_add_u32 v{vSC+k}, -1, v{vSC+k}")
def ce(g, xs, ts, perm, k):
    for x, t in zip(xs, ts): g(f"v_mov_b32_dpp v{t}, v{x} {perm} {DPPM}")
    for x, t in zip(xs, ts): g(f"v_med3_u32 v{x}, v{x}, v{t}, v{vSC+k}")
def resort(g, xs, ts, same=False):
    if same: ce(g, xs, ts, "row_ror:4", 2)
    else:
        for x, t in zip(xs, ts): g(f"v_max_u32_dpp v{t}, v{x}, v{x} row_shl:4 row_mask:0xf bank_mask:0x5")
        for x, t in zip(xs, ts): g(f"v_min_u32_dpp v{t}, v{x}, v{x} row_shr:4 row_mask:0xf bank_mask:0xa")
        xs, ts = ts, xs
    ce(g, xs, ts, "quad_perm:[2,3,0,1]", 1); ce(g, xs, ts, "quad_perm:[1,0,3,2]", 0)
    return xs, ts
def sort8(g, xs, ts):
    ce(g, xs, ts, "quad_perm:[1,0,3,2]", 0)
    ce(g, xs, ts, "quad_perm:[3,2,1,0]", 1); ce(g, xs, ts, "quad_perm:[1,0,3,2]", 0)
    ce(g, xs, ts, "row_half_mirror", 2); ce(g, xs, ts, "quad_perm:[2,3,0,1]", 1); ce(g, xs, ts, "quad_perm:[1,0,3,2]", 0)
def merge_wave(g, x, t, final_sort):
    g(f"v_max_u32_dpp v{x}, v{x}, v{x} row_mirror {DPPM}")
    (x,), (t,) = resort(g, [x], [t])
    g(f"v_mov_b32 v{t}, v{x}\nv_permlane16_swap_b32 v{x}, v{t}\nv_max_u32_dpp v{x}, v{t}, v{x} row_half_mirror {DPPM}")
    (x,), (t,) = resort(g, [x], [t], True)
    g(f"v_mov_b32 v{t}, v{x}\nv_permlane32_swap_b32 v{x}, v{t}\nv_max_u32_dpp v{x}, v{t}, v{x} row_half_mirror {DPPM}")
    if final_sort: (x,), (t,) = resort(g, [x], [t], True)
    return x
def wave_sum(g, xs, t):
    for sh in (1, 2, 4, 8):
        for x in xs: g(f"v_add_f32_dpp v{x}, v{x}, v{x} row_ror:{sh} {DPPM}")
    for sw in (16, 32):
        for x in xs: g(f"v_mov_b32 v{t}, v{x}\nv_permlane{sw}_swap_b32 v{x}, v{t}\nv_add_f32 v{x}, v{x}, v{t}")
def to_key(g, x, t):
    g(f"v_ashrrev_i32 v{t}, 31, v{x}\nv_or_b32 v{t}, 0x80000000, v{t}\nv_xor_b32 v{x}, v{x}, v{t}")
def from_key(g, d, k, t):
    g(f"v_and_b32 v{d}, 0xffffc000, v{k}\nv_or_b32 v{d}, 0x2000, v{d}\nv_ashrrev_i32 v{t}, 31, v{d}\nv_not_b32 v{t}, v{t}\nv_or_b32 v{t}, 0x80000000, v{t}\nv_xor_b32 v{d}, v{d}, v{t}")

def gather(g, loads, bad, consume, final, waits=None, full="-1"):
    N = len(loads)
    L = g.lab("ga"); R = g.lab("gr"); E = g.lab("gae")
    g(f"s_mov_b32 s57, {SPIN}\n{L}:")
    for n in range(N):
        w = (N - 1 - n) if waits is None else waits[n]
        if w is not None: g(f"s_waitcnt vmcnt({w})")
        consume(n)
    final()
    g(f"s_cbranch_vccnz {R}\n{E}:")
    def retry():
        g(f"{R}:\ns_sub_u32 s57, s57, 1\ns_cbranch_scc1 {E}")
        for n in range(N):
            bad(n); g("s_wqm_b64 exec, vcc"); g(loads[n]); g(f"s_mov_b64 exec, {full}")
        g(f"s_waitcnt vmcnt(0)\ns_branch {L}")
    g.slow.append(retry)
NOP = lambda n: None

KR = 100
def key_wait(g):
    g(f"v_lshrrev_b32 v14, 3, v{vL}\nv_lshlrev_b32 v14, 6, v14\nv_lshl_add_u32 v14, v{vL}, 3, v14\ns_mov_b32 s58, {OFF_KEY}\nv_mov_b32 v16, s28\ns_mov_b32 s30, 0")
    ld = [f"buffer_load_dwordx2 v[{KR+2*n}:{KR+2*n+1}], v14, s[16:19], s58 offen offset:{1024*n} sc1" for n in range(4)]
    for l in ld: g(l)
    gather(g, ld, lambda n: g(f"v_cmp_ne_u32 vcc, s28, v{KR+2*n+1}"),
           lambda n: g(f"v_xor_b32 v15, s28, v{KR+1}" if n == 0 else f"v_bitop3_b32 v15, v15, v{KR+2*n+1}, v16 bitop3:0xf6"),
           lambda: g("v_cmp_ne_u32 vcc, 0, v15"), waits=[0, None, None, None])
def key_merge(g):
    L = g.lab("km"); g(f"{L}:")
    g(f"v_max_u32_dpp v92, v{KR+2}, v{KR} row_half_mirror {DPPM}\nv_max_u32_dpp v94, v{KR+6}, v{KR+4} row_half_mirror {DPPM}")
    (a, b), (t, _) = resort(g, [92, 94], [93, 95])
    g(f"v_max_u32_dpp v{a}, v{b}, v{a} row_half_mirror {DPPM}")
    (x,), (t,) = resort(g, [a], [t])
    return L, merge_wave(g, x, t, False)
def key_refine(g, Lm, x):
    R = g.lab("rf"); E = g.lab("rfe")
    g(f"s_cmp_lg_u32 s30, 0\ns_cbranch_scc1 {E}")
    g(f"v_min_u32_dpp v96, v{x}, v{x} quad_perm:[1,0,3,2] {DPPM}\nv_min_u32_dpp v96, v96, v96 quad_perm:[2,3,0,1] {DPPM}\nv_min_u32_dpp v96, v96, v96 row_half_mirror {DPPM}")
    from_key(g, 97, 96, 98)
    g("v_and_b32 v98, 0x7f800000, v97\nv_fmamk_f32 v98, v98, 0xbcc00000, v254\nv_sub_f32 v96, v97, v98")
    to_key(g, 96, 99)
    for n in range(4): g(f"v_cmp_ge_u32 s[{8+2*(n&1)}:{9+2*(n&1)}], v{KR+2*n}, v96\ns_bcnt1_i32_b64 s{12+n}, s[{8+2*(n&1)}:{9+2*(n&1)}]")
    g(f"s_add_u32 s12, s12, s13\ns_add_u32 s14, s14, s15\ns_add_u32 s12, s12, s14\ns_cmp_gt_u32 s12, 8\ns_cbranch_scc1 {R}\n{E}:")
    def slow():
        g(f"{R}:\ns_waitcnt vmcnt(0)\ns_mov_b32 s30, 1\nv_add_f32 v97, v97, v98\nv_mul_u32_u24 v91, 20, v{vL}")
        to_key(g, 97, 99)
        for n in range(4):
            k = KR + 2*n; A = g.lab("ra"); B = g.lab("rb"); P = g.lab("rp"); Q = g.lab("rq")
            g(f"v_cmp_ge_u32 s[8:9], v{k}, v96\nv_cmp_le_u32 vcc, v{k}, v97\ns_and_b64 s[8:9], s[8:9], vcc\n{A}:\ns_cmp_eq_u64 s[8:9], 0\ns_cbranch_scc1 {B}")
            g(f"s_ff1_i32_b64 s10, s[8:9]\ns_bitset0_b64 s[8:9], s10\nv_readlane_b32 s11, v{k}, s10")
            g(f"s_not_b32 s12, s11\ns_bfe_u32 s12, s12, 0x50009\ns_lshl_b32 s12, s12, 3\ns_and_b32 s13, s11, 7\ns_add_u32 s12, s12, s13\ns_mul_i32 s12, s12, 1280\ns_add_u32 s12, s12, {OFF_CN}")
            g(f"s_mov_b32 s57, {SPIN}\n{P}:\nbuffer_load_dwordx4 v[84:87], v91, s[16:19], s12 offen sc1\nbuffer_load_dword v88, v91, s[16:19], s12 offen offset:16 sc1\ns_waitcnt vmcnt(0)")
            g(f"v_max3_u32 v89, v84, v85, v86\nv_max3_u32 v89, v89, v87, v88\nv_cmp_eq_u32 vcc, -1, v89\ns_cbranch_vccz {Q}\ns_sub_u32 s57, s57, 1\ns_cbranch_scc0 {P}\n{Q}:\nv_mov_b32 v89, 0")
            for i in range(5): g(f"v_dot2c_f32_bf16 v89, v{vW5+i}, v{84+i}")
            wave_sum(g, [89], 90); to_key(g, 89, 90)
            g(f"s_and_b32 s11, s11, 0x3fff\nv_and_b32 v89, 0xffffc000, v89\nv_or_b32 v89, s11, v89\ns_lshl_b64 s[14:15], 1, s10\ns_mov_b64 exec, s[14:15]\nv_mov_b32 v{k}, v89\ns_mov_b64 exec, -1\ns_branch {A}\n{B}:")
        sort8(g, [KR + 2*n for n in range(4)], [KR + 2*n + 1 for n in range(4)])
        g(f"s_branch {Lm}")
    g.slow.append(slow)

def build(opt):
    g = G(opt)
    g("s_cmp_ge_u32 s2, 256\ns_cbranch_scc0 L_go\ns_endpgm\nL_go:")
    g("s_load_dwordx16 s[32:47], s[0:1], 0\ns_load_dwordx8 s[48:55], s[0:1], 64")
    if opt.get("stamps"): g("s_memrealtime s[96:97]\ns_memtime s[94:95]")
    if opt.get("lite"):
        for i in range(78, 92, 2): g(f"s_mov_b32 s{i}, 0")
    g(f"v_lshrrev_b32 v14, 6, v0\nv_and_b32 v{vL}, 63, v0\nv_readfirstlane_b32 s5, v14\ns_lshr_b32 s57, s2, 3")
    g("s_cmp_lg_u32 s5, 7\ns_cbranch_scc1 L_nopf")
    g(f"s_getpc_b64 s[20:21]\nL_pc:\ns_sub_u32 s20, s20, L_pc-{KN}\ns_subb_u32 s21, s21, 0\ns_and_b32 s21, s21, 0xffff\ns_mov_b32 s22, L_codeend-{KN}\ns_mov_b32 s23, 0x20000")
    g(f"s_lshl_b32 s58, s57, 7\nv_lshlrev_b32 v14, 12, v{vL}\ns_mov_b64 exec, 0xffff\nbuffer_load_dword v230, v14, s[20:23], s58 offen\ns_mov_b64 exec, -1")
    g(f"v_lshlrev_b32 v18, 4, v{vL}\nv_add_u32 v18, {L_FL}, v18\nv_mov_b32 v14, 0\nv_mov_b32 v15, 0\nv_mov_b32 v16, 0\nv_mov_b32 v17, 0\nds_write_b128 v18, v[14:17]\nL_nopf:")
    g("s_and_b32 s3, s2, 6\ns_lshl_b32 s3, s3, 2\ns_and_b32 s58, s57, 7\ns_add_u32 s3, s3, s58")
    g("s_and_b32 s4, s2, 1\ns_lshl_b32 s4, s4, 2\ns_lshr_b32 s58, s57, 3\ns_add_u32 s4, s4, s58")
    g("s_mul_i32 s7, s4, 5\ns_lshl1_add_u32 s7, s3, s7\ns_mul_i32 s58, s7, 205\ns_lshr_b32 s58, s58, 11\ns_mul_i32 s58, s58, 10\ns_sub_u32 s7, s7, s58")
    g("s_and_b32 s6, s5, 3\ns_cmp_ge_u32 s5, 4\ns_cbranch_scc1 L_E")

    def consts():
        if opt.get("stamps") and not opt.get("lite"):
            for i in range(77, 92): g(f"s_mov_b32 s{i}, 0")
        g(f"v_and_b32 v{vJ}, 15, v{vL}\nv_lshrrev_b32 v{vQ}, 4, v{vL}")
        g(f"s_mov_b32 s31, 0xffff0000\ns_mul_i32 s62, s6, 5120\ns_mov_b32 s64, {LOG2E}\ns_mov_b32 s65, {LOG2E}\ns_mov_b32 s66, 0x3f803f80")
        g(f"s_lshl_b32 s58, s6, 2\ns_add_u32 s58, s58, {L_FL}\nv_mov_b32 v{vFT}, s58\nv_and_b32 v14, 3, v{vL}\nv_lshlrev_b32 v14, 2, v14\nv_add_u32 v{vF4}, {L_FL}, v14")
    def roles():
        g("s_bitcmp1_b32 s3, 0\ns_mov_b32 s58, 0x43765210\ns_cselect_b32 s58, 0x43276510, s58\ns_mov_b32 s59, 0x00400000\ns_cselect_b32 s59, 0x00088400, s59")
        g("s_lshl_b32 s56, s4, 2\ns_lshr_b32 s58, s58, s56\ns_and_b32 s0, s58, 7\ns_lshr_b32 s59, s59, s56\ns_and_b32 s1, s59, 15\ns_bfe_u32 s59, s3, 0x20001\ns_add_u32 s1, s1, s59")
        g("s_and_b32 s59, s2, 7\ns_mul_i32 s70, s59, 6\ns_mul_i32 s59, s59, 5\ns_add_u32 s59, s59, 42")
        g("s_cmp_lt_u32 s1, 6\ns_cselect_b32 s70, s70, s59\ns_add_u32 s70, s70, s1\ns_cmp_eq_u32 s1, 11\ns_cselect_b32 s70, 88, s70")
    def tag():
        g("s_mul_i32 s28, s28, 0x9e3779b5\ns_add_u32 s28, s28, 0x7f4a7c15")
    def prod(i, d):
        if i == 0: return f"s_mov_b32 s{d}, s4\n"
        return f"s_and_b32 s{d}, s3, 7\ns_add_u32 s{d}, s{d}, {i}\ns_cmp_ge_u32 s{d}, 8\ns_addc_u32 s{d}, s{d}, s4\ns_and_b32 s{d}, s{d}, 7\n"
    def wo_setup(va):
        g(f"v_bfe_u32 v14, v{vL}, 2, 2\nv_xor_b32 v15, v14, v{vQ}\nv_lshlrev_b32 v15, 6, v15\nv_and_b32 v16, 3, v{vL}\nv_lshl_add_u32 v15, v16, 4, v15\nv_mul_u32_u24 v17, 1280, v{vQ}\nv_add_u32 v{va}, v15, v17")
        g("s_mul_i32 s29, s6, 25600\ns_lshl_b32 s58, s0, 8\ns_add_u32 s29, s29, s58")
        g.srd(24, 38, 640*1280)
    def wo_pieces(c, va):
        out = []
        for i in range(5):
            t = prod(c, 30) + f"s_mul_i32 s30, s30, {80*1280}\ns_add_u32 s30, s30, s29\n" if i == 0 else f"s_add_u32 s30, s30, {4*1280}\n"
            out.append(f"s_add_u32 m0, s62, {S[WSL[c]]+1024*i}\n" + t + f"buffer_load_dwordx4 v{va}, s[24:27], s30 offen lds")
        return out

    NX = 5
    g(f"v_lshrrev_b32 v14, 3, v{vL}\nv_and_b32 v15, 7, v{vL}\nv_lshrrev_b32 v16, 1, v14\nv_xor_b32 v15, v15, v16\nv_lshlrev_b32 v15, 4, v15")
    g(f"v_mul_u32_u24 v14, 1280, v14\nv_add_u32 v18, v14, v15\nv_xor_b32 v15, 64, v15\nv_add_u32 v19, v14, v15\nv_add_u32 v19, {8*1280-1024}, v19")
    g(f"s_lshl2_add_u32 s67, s3, s6\ns_mul_i32 s67, s67, 20480\ns_mov_b32 s10, {2048*1280}\ns_mov_b32 s11, 0x20000\ns_mul_i32 s63, s6, {SLOT}\ns_add_u32 s63, s63, {S[3]}")
    g("s_lshl_b32 s68, s7, 7\ns_add_u32 s68, s68, s67\ns_add_u32 s69, s67, 1280\ns_waitcnt lgkmcnt(0)\ns_mov_b32 s8, s32\ns_and_b32 s9, s33, 0xffff")
    def xdma(i):
        g(f"s_add_u32 m0, s63, {2048*i}\ns_add_u32 s58, s68, 128\nbuffer_load_dwordx4 v18, s[8:11], s68 offen lds\nbuffer_load_dwordx4 v19, s[8:11], s68 offen offset:1024 lds")
        if i != 9: g("s_cmp_eq_u32 s58, s69\ns_cselect_b32 s68, s67, s58")
    g.lite("ka")
    for i in range(NX): xdma(i)
    g.lite("xi")
    consts(); w_tr_addr(g)
    g(f"v_lshrrev_b32 v14, 1, v{vJ}\nv_xor_b32 v14, v14, v{vQ}\nv_lshlrev_b32 v14, 4, v14\nv_lshl_add_u32 v14, v{vJ}, 7, v14\nv_add_u32 v20, s63, v14\nv_xor_b32 v21, 64, v20")
    g(f"s_lshl_b32 s58, s6, 4\nv_lshl_add_u32 v14, v{vQ}, 6, v{vJ}\nv_add_u32 v23, s58, v14")
    g(f"v_mul_u32_u24 v14, 48, v23\nv_add_u32 v247, {M_VX}, v14\ns_mul_i32 s58, s6, 3072\ns_add_u32 s58, s58, {M_VX}\nv_lshl_add_u32 v246, v{vL}, 4, s58")
    g(f"v_mov_b32 v{PB+10}, s66\nv_mov_b32 v{PB+11}, s66\ns_mov_b32 s72, 0x3f80\ns_mov_b32 s73, 0x3f800000")
    def gsetup1():
        roles(); phi_waddr(g, 22); sort_consts(g)
        g.srd(16, 54, WS_END); g.srd(20, 42, 1280); g(f"v_mul_u32_u24 v245, 20, v{vL}")
    if opt["gs"] >= 1: gsetup1()
    g("v_mov_b32 v14, 0\nv_mov_b32 v16, 0")
    lg = Lgkm(g); xi = {}
    for i in range(11):
        if i < 10:
            if i + NX < 10: xdma(i + NX)
            if i + NX == 9: g("s_barrier")
            g(f"s_waitcnt vmcnt({2*(min(9, i + NX) - i)})")
            g.lite(f"x{i}")
            xi[i] = lg.op(f"ds_read_b128 v[{XF+8*i}:{XF+8*i+3}], v20 offset:{2048*i}\nds_read_b128 v[{XF+8*i+4}:{XF+8*i+7}], v21 offset:{2048*i}")
            if i == 9: lg.op(g.fset_t(F_XR))
        if i > 0:
            lg.wait(xi[i-1])
            for r in range(XF + 8*i - 8, XF + 8*i): g(f"v_dot2c_f32_bf16 v14, s66, v{r}\nv_dot2c_f32_bf16 v16, v{r}, v{r}")
    g.stamp(1, "x")
    g("s_load_dword s28, s[54:55], 12")
    g("v_permlane32_swap_b32 v14, v16\nv_add_f32 v14, v14, v16\nv_mov_b32 v16, v14\nv_permlane16_swap_b32 v14, v16\nv_add_f32 v14, v14, v16\nv_mov_b32 v16, v14\nv_permlane32_swap_b32 v14, v16")
    g.ln_scalars(14, 16, 18, 19, 15)
    def norm(n):
        T_ = 200 + 8*(n & 1)
        for q in range(4): g(f"v_dot2_f32_bf16 v{T_+2*q}, v{XF+4*n+q}, s72, v18\nv_dot2_f32_bf16 v{T_+2*q+1}, v{XF+4*n+q}, s73, v18")
        for q in range(8): g.rnd(T_+q, T_+q)
        for q in range(4): g(f"v_pk_mul_f32 v[{T_+2*q}:{T_+2*q+1}], v[{T_+2*q}:{T_+2*q+1}], v[18:19] op_sel:[0,1] op_sel_hi:[1,1]")
        for q in range(4): g(cvt(XF+4*n+q, T_+2*q))
    for n in range(18): norm(n)
    g.stamp(2)
    g(g.fget_t(F_LAND, 14))
    norm(18)
    g("s_waitcnt lgkmcnt(0)"); g.fcheck(F_LAND, 14)
    def kout(part):
        def f(lg):
            for i in range(4*part, min(10, 4*part + 4)): g(cvt(PB+i, AC+2*i))
            if part < 2: lg.op(f"ds_write_b128 v246, v[{PB+4*part}:{PB+4*part+3}] offset:{1024*part}")
            else: lg.op(f"ds_write_b64 v246, v[{PB+8}:{PB+9}] offset:2048"); lg.op(g.fset_t(F_KR))
        return f
    late = opt["late"]; ge = 14 - late
    gemm(g, 0, 10, range(1, 10), (0, 1, 2) + tuple(range(5, ge - 5)), ev={99: kout(0), 101: kout(1), 102: kout(2)}, pre=lambda: norm(19))
    for i in range(3):
        for q in range(4*i, min(10, 4*i + 4)): g(cvt(PB+q, AC2+2*q))
        g(f"ds_write_b128 v247, v[{PB+4*i}:{PB+4*i+3}] offset:{16*i}")
    g("s_waitcnt lgkmcnt(0)")
    g.stamp(3, "vd")
    g("s_barrier")
    g.stamp(4, "bkv")
    if opt["gs"] < 1: gsetup1()
    g(f"buffer_load_dwordx4 v[{vW5}:{vW5+3}], v245, s[20:23], 0 offen\nbuffer_load_dword v{vW5+4}, v245, s[20:23], 0 offen offset:16")
    tag(); wo_setup(253)
    g(f"v_lshrrev_b32 v16, 5, v{vL}\nv_and_b32 v17, 31, v{vL}\ns_add_u32 s58, s62, {S_PQ}\nv_lshl_add_u32 v14, v17, 4, s58")
    g("v_lshl_add_u32 v252, v16, 11, v14\nv_lshl_add_u32 v245, v16, 3, v14")
    g("v_lshrrev_b32 v15, 2, v17\nv_lshlrev_b32 v15, 2, v15\ns_mov_b32 s58, 0x55443120\nv_lshrrev_b32 v15, v15, s58\nv_and_b32 v15, 7, v15")
    g("v_and_b32 v17, 3, v17\nv_lshl_add_u32 v17, v15, 2, v17\nv_mad_u32_u24 v17, v16, 24, v17\nv_lshlrev_b32 v251, 4, v17")
    g(f"s_lshl2_add_u32 s71, s4, s6\ns_mul_i32 s71, s71, 3072\ns_add_u32 s71, s71, {OFF_F}")
    g(f"v_lshlrev_b32 v14, 12, v{vQ}\nv_lshl_add_u32 v14, v23, 4, v14\nv_add_u32 v23, {S_PQ}, v14")
    g(f"s_mul_i32 s72, s3, {8*OBLK}\ns_mul_i32 s58, s6, {OHD}\ns_add_u32 s72, s72, s58\ns_add_u32 s72, s72, {OFF_O}\ns_mul_i32 s69, s4, {OBLK}\ns_add_u32 s69, s69, s72")
    g(f"v_lshlrev_b32 v4, 4, v{vL}\ns_lshl_b32 s58, s6, 11\ns_add_u32 s58, s58, {S_O}\nv_add_u32 v6, s58, v4\nv_add_u32 v7, {S_O2-S_O}, v6")
    g(f"s_lshl_b32 s58, s6, 9\ns_add_u32 s58, s58, {8192+S_O}\nv_lshl_add_u32 v8, v{vL}, 3, s58\nv_add_u32 v5, {S_O2-S_O}, v8\nv_cmp_le_u32 s[74:75], 32, v{vL}")
    phi_wload(g, 188, 22)
    g("s_waitcnt lgkmcnt(0)")
    gemm(g, 10, 5, range(1, 5), (1, 2, 3))
    g.stamp(5)
    g(g.fget_t(F_REL + 12, 20))
    for i in range(10): g(cvt(PB+i, AC+2*i))
    g.lite("q1"); phi(g, 188, True); g.lite("q4")
    g("s_waitcnt lgkmcnt(0) vmcnt(0)"); g.fcheck(F_REL + 12, 20)
    for pl, src in enumerate(((EP, EP+2, EP+4, EP+6), (EP+8, EP+10, EP+12, EP+14), (EN, EN+2, EN+4, EN+6), (EN+8, EN+10, EN+12, EN+14), (EP+16, EP+18, EN+16, EN+18))):
        for q in range(4): g(cvt(PP+4*pl+q, src[q]))
        g(f"ds_write_b128 v23, v[{PP+4*pl}:{PP+4*pl+3}] offset:{1024*pl}")
    g.fset(F_PQ); g.lite("q5")
    QB, FA, OD = 24, 48, 64
    for r in (QB+10, QB+11, QB+22, QB+23, 98, 99): g(f"v_mov_b32 v{r}, 0")
    ld = [f"buffer_load_dwordx4 v[{FA+4*q}:{FA+4*q+3}], v251, s[16:19], s71 offen offset:{768*q} sc1" for q in range(4)]
    def fgate():
        g("s_cmp_ge_u32 s0, 5\ns_cbranch_scc1 L_nofwo"); g.fwait(F_WL, 15); g("L_nofwo:")
        for l in ld: g(l)
    if opt["fearly"]: fgate()
    g.fwait(F_PQ, 15)
    for tau in range(2):
        r = QB + 12*tau
        g(f"ds_read_b128 v[{r}:{r+3}], v252 offset:{512*tau}\nds_read_b128 v[{r+4}:{r+7}], v252 offset:{1024+512*tau}\nds_read_b64 v[{r+8}:{r+9}], v245 offset:{4096+512*tau}")
    g.stamp(6, "phq")
    if not opt["fearly"]: fgate()
    g("v_mov_b32 v107, s28")
    FT = (FA, FA+7, FA+8, FA+15)
    gather(g, ld, lambda n: g(f"v_cmp_ne_u32 vcc, s28, v{FT[n]}"),
           lambda n: g(f"v_xor_b32 v15, s28, v{FA}" if n == 0 else f"v_bitop3_b32 v15, v15, v{FT[n]}, v107 bitop3:0xf6"),
           lambda: g("v_cmp_ne_u32 vcc, 0, v15"), waits=[0, None, None, None])
    g(f"v_lshl_or_b32 v96, v{FA+6}, 16, v{FA+1}\nv_lshl_or_b32 v97, v{FA+14}, 16, v{FA+9}\ns_waitcnt lgkmcnt(0)")
    g.stamp(7, "F")
    for tau in range(2):
        d = OD + 16*tau; b = QB + 12*tau
        g(mfma32(d, FA+2, b, True)); g(mfma32(d, FA+10, b+4, False)); g(mfma32(d, 96, b+8, False))
    for tau in range(2):
        d = OD + 16*tau; o = 100 + 8*tau
        g.rnd(d+12, d+12); g(f"v_add_f32 v{d+12}, 0x358637bd, v{d+12}"); g.rnd(d+12, d+12); g(f"v_rcp_f32 v{d+12}, v{d+12}")
        for i in range(8): g.rnd(d+i, d+i)
        if tau == 0:
            for i in range(8): g(f"v_mul_f32 v{d+i}, v{d+12}, v{d+i}")
        else:
            for i in range(0, 8, 2): g(f"v_pk_mul_f32 v[{d+i}:{d+i+1}], v[{d+i}:{d+i+1}], v[{d+12}:{d+13}] op_sel_hi:[1,0]")
        for i in range(4): g(cvt(o+i, d+2*i))
        g(f"buffer_store_dwordx4 v[{o}:{o+3}], v4, s[16:19], s69 offen offset:{1024*tau} sc1")
    d = OD + 8
    for i in range(5): g(f"v_cndmask_b32 v{d+i}, v{d+i}, v{d+16+i}, s[74:75]")
    for i in range(4): g.rnd(d+i, d+i)
    for i in (0, 2): g(f"v_pk_mul_f32 v[{d+i}:{d+i+1}], v[{d+i}:{d+i+1}], v[{d+4}:{d+5}] op_sel_hi:[1,0]")
    g(cvt(104, d)); g(cvt(105, d+2))
    g("v_add3_u32 v106, s28, v100, v101\nv_add3_u32 v106, v106, v102, v103\nv_add3_u32 v106, v106, v108, v109\nv_add3_u32 v106, v106, v110, v111\nv_add3_u32 v106, v106, v104, v105")
    g("buffer_store_dwordx4 v[104:107], v4, s[16:19], s69 offen offset:2048 sc1")
    g.stamp(8, "opub")
    g("s_cmp_ge_u32 s0, 5\ns_cbranch_scc1 L_G_aux")

    def o_put(i, a, b, c):
        base = (i % 4) * 10240
        g(f"ds_write_b128 v{6 + i//4}, v[{a}:{a+3}] offset:{base}\nds_write_b128 v{6 + i//4}, v[{b}:{b+3}] offset:{base+1024}\nds_write_b64 v{(8, 5)[i//4]}, v[{c}:{c+1}] offset:{base}")
        g.fset(F_OS + i)
    g.fwait(F_WOR, 15)
    o_put(0, 100, 108, 104)
    vm = Vm(g); oend = {}
    for c in (5, 6, 7):
        if c == 7: g.fwait(F_OS, 15)
        for p in wo_pieces(c, 253): vm.op(p)
    for i in range(1, 8): g(prod(i, 58) + f"s_mul_i32 s58, s58, {OBLK}\ns_add_u32 s{35+i}, s58, s72")
    vm.wait(0)
    g.stamp(9, "oh")
    OR = lambda i: 140 + 12*i
    def o_ld(i): return "\n".join(f"buffer_load_dwordx4 v[{OR(i)+4*q}:{OR(i)+4*q+3}], v4, s[16:19], s{35+i} offen offset:{1024*q} sc1" for q in range(3))
    for i in range(1, 8):
        r = OR(i)
        while len(oend) < min(7, i + opt["oahead"]): oend[len(oend) + 1] = vm.op(o_ld(len(oend) + 1))
        if i == 1:
            g("v_mov_b32 v125, 0")
            for k in range(5): g(f"v_dot2c_f32_bf16 v125, s66, v{vW5+k}")
            wave_sum(g, [125], 18)
        def cons(n):
            g(f"v_add3_u32 v17, s28, v{r}, v{r+1}")
            for q in range(2, 10, 2): g(f"v_add3_u32 v17, v17, v{r+q}, v{r+q+1}")
        gather(g, [o_ld(i)], NOP, cons, lambda: g(f"v_cmp_ne_u32 vcc, v17, v{r+10}"), waits=[vm.n - oend[i]])
        o_put(i, r, r + 4, r + 8); g.lite(f"op{i}")
        if i % 3 == 2: g("s_waitcnt lgkmcnt(4)")
    g.stamp(10)
    g(f"v_add_u32 v15, {L_SP}, v4\ns_mul_i32 s73, s3, 5120\ns_add_u32 s73, s73, {OFF_ST}\ns_lshl_b32 s58, s0, 10\ns_add_u32 s58, s58, s73\ns_add_u32 s59, s73, 4096")
    g(f"s_lshl_b32 s56, s3, 6\ns_sub_u32 s56, 2047, s56\nv_sub_u32 v60, s56, v{vL}\nv_lshlrev_b32 v60, 3, v60\nv_lshlrev_b32 v61, 3, v{vL}\nv_add_u32 v62, {L_MR}, v4")
    g(f"v_lshlrev_b32 v63, 2, v{vL}\nv_add_u32 v63, {L_TOP}, v63\nv_mov_b32 v65, s28\ns_lshl_b32 s68, s3, 7\ns_add_u32 s68, s68, {OFF_KEY}\ns_mov_b32 s67, 0xffffc000")
    g("s_barrier")
    g("s_cmp_lg_u32 s6, 0\ns_cbranch_scc1 L_B_join")
    for i in range(4): g(f"ds_read_b96 v[{24+4*i}:{26+4*i}], v15 offset:{1024*i}")
    g("v_mov_b32 v27, s28\ns_waitcnt lgkmcnt(2)\nv_pk_add_f32 v[24:25], v[24:25], v[28:29]\nv_add_f32 v26, v26, v30\ns_waitcnt lgkmcnt(0)")
    g("v_pk_add_f32 v[32:33], v[32:33], v[36:37]\nv_add_f32 v34, v34, v38\nv_pk_add_f32 v[24:25], v[24:25], v[32:33]\nv_add_f32 v26, v26, v34")
    g("buffer_store_dwordx4 v[24:27], v4, s[16:19], s58 offen sc1")
    g.stamp(11, "st")
    g("s_waitcnt vmcnt(0)")
    ld = [f"buffer_load_dwordx4 v[{40+4*i}:{43+4*i}], v4, s[16:19], s73 offen offset:{1024*i} sc1" for i in range(4)] + ["buffer_load_dwordx4 v[56:59], v4, s[16:19], s59 offen sc1"]
    for l in ld: g(l)
    gather(g, ld, lambda n: g(f"v_cmp_ne_u32 vcc, s28, v{43+4*n}"),
           lambda n: g("v_xor_b32 v15, s28, v43" if n == 0 else f"v_bitop3_b32 v15, v15, v{43+4*n}, v65 bitop3:0xf6"),
           lambda: g("v_cmp_ne_u32 vcc, 0, v15"), waits=[0, None, None, None, None])
    g.stamp(12, "sts")
    g("v_pk_add_f32 v[40:41], v[40:41], v[44:45]\nv_pk_add_f32 v[48:49], v[48:49], v[52:53]\nv_pk_add_f32 v[40:41], v[40:41], v[56:57]\nv_pk_add_f32 v[40:41], v[40:41], v[48:49]")
    g("v_add_f32 v42, v42, v46\nv_add_f32 v50, v50, v54\nv_add_f32 v42, v42, v58\nv_add_f32 v42, v42, v50")
    g.ln_scalars(40, 41, 44, 45, 46)
    g("v_fmac_f32 v42, v44, v125\nv_mul_f32 v42, v42, v45")
    to_key(g, 42, 46)
    g("v_and_or_b32 v46, v42, s67, v60\nv_mov_b32 v42, v46\nds_write_b96 v62, v[44:46]")
    sort8(g, [42], [43])
    x = merge_wave(g, 42, 43, True)
    g(f"v_or_b32 v64, v{x}, v{vL}\ns_mov_b64 exec, 0xff")
    if not opt["allkey"]: g("s_cmp_lg_u32 s0, 0\ns_cbranch_scc1 L_nokey")
    g("buffer_store_dwordx2 v[64:65], v61, s[16:19], s68 offen sc1\nL_nokey:\nds_write_b32 v63, v64\ns_mov_b64 exec, -1\ns_waitcnt lgkmcnt(0)")
    g.stamp(13, "key")
    g("L_B_join:")
    g.srd(24, 50, 2048*1280)
    g(f"s_lshl_b32 s58, s5, 2\ns_add_u32 s58, s58, {L_TOP}\nv_mov_b32 v16, s58\nv_mov_b32 v17, {L_TOP+28}")
    g(f"s_lshl_b32 s58, s5, 3\nv_add_u32 v21, s58, v{vQ}\nv_add_u32 v22, 4, v21")
    def rowaddr(k):
        g(f"v_and_b32 v{84+k}, 7, v{20+k}\nv_xor_b32 v{84+k}, v{84+k}, v{vJ}\nv_lshlrev_b32 v{84+k}, 4, v{84+k}\nv_lshl_add_u32 v{84+k}, v{20+k}, 8, v{84+k}\nv_add_u32 v{84+k}, {S_HT}, v{84+k}")
        g(f"v_lshlrev_b32 v{88+k}, 4, v{20+k}\nv_add_u32 v{88+k}, {L_MR}, v{88+k}")
    rowaddr(1); rowaddr(2)
    g(f"s_lshl3_add_u32 s60, s3, s5\ns_mul_i32 s60, s60, 1280\ns_lshl_b32 s59, s0, 8\ns_add_u32 s60, s60, s59\ns_add_u32 s60, s60, {OFF_CN}")
    g(f"s_add_u32 s61, s60, {256*1280}\ns_mul_i32 s56, s3, {64*1280}\ns_add_u32 s56, s56, s59\nv_lshlrev_b32 v18, 4, v{vJ}")
    g("s_barrier")
    g("ds_read_b32 v20, v16\nds_read_b32 v19, v17\ns_waitcnt lgkmcnt(1)\nv_not_b32 v20, v20\nv_bfe_u32 v20, v20, 3, 6")
    rowaddr(0)
    for k in range(3): g(f"ds_read_b128 v[{24+8*k}:{27+8*k}], v{84+k}\nds_read_b96 v[{28+8*k}:{30+8*k}], v{88+k}")
    for k in range(3):
        h = 24 + 8*k; mr = h + 4; o = 68 + 4*k
        g(f"v_mul_u32_u24 v{80+k}, 1280, v{20+k}\nv_add_u32 v{80+k}, v{80+k}, v18\ns_waitcnt lgkmcnt({4-2*k})")
        for q in range(4): g(f"v_lshlrev_b32 v{48+2*q}, 16, v{h+q}\nv_and_b32 v{49+2*q}, s31, v{h+q}")
        for q in range(4): g(f"v_pk_add_f32 v[{56+2*q}:{57+2*q}], v[{48+2*q}:{49+2*q}], v[{mr}:{mr+1}] op_sel_hi:[1,0]")
        for q in range(8): g.rnd(56+q, 56+q)
        for q in range(4): g(f"v_pk_mul_f32 v[{56+2*q}:{57+2*q}], v[{56+2*q}:{57+2*q}], v[{mr}:{mr+1}] op_sel:[0,1] op_sel_hi:[1,1]")
        if k == 0:
            for q in range(4): g(cvt(64+q, 56+2*q))
            g("s_mov_b64 exec, 0xffff\nbuffer_store_dwordx4 v[64:67], v18, s[16:19], s60 offen sc1\ns_mov_b64 exec, -1")
        for q in range(8): g.rnd(56+q, 56+q)
        for q in range(4): g(f"v_pk_add_f32 v[{56+2*q}:{57+2*q}], v[{56+2*q}:{57+2*q}], v[{48+2*q}:{49+2*q}]")
        for q in range(4): g(cvt(o+q, 56+2*q))
        if k == 0: g(f"s_mov_b64 exec, 0xffff\nbuffer_store_dwordx4 v[{o}:{o+3}], v80, s[24:27], s56 offen sc1\ns_mov_b64 exec, -1")
    g("v_and_b32 v19, -8, v19\nv_cmp_lt_u32 s[62:63], v38, v19\nv_cmp_lt_u32 s[64:65], v46, v19")
    g("s_waitcnt vmcnt(0)\ns_mov_b64 exec, 0xffff\nbuffer_store_dwordx4 v[24:27], v18, s[16:19], s61 offen sc1")
    for k in (1, 2): g(f"s_mov_b64 exec, s[{60+2*k}:{61+2*k}]\nbuffer_store_dwordx4 v[{68+4*k}:{71+4*k}], v{80+k}, s[24:27], s56 offen sc1")
    g("s_mov_b64 exec, -1")
    g.stamp(14)
    g.end()
    g.flush_slow()

    g("L_E:")
    WRR, XR = 232, 240
    g("s_waitcnt lgkmcnt(0)")
    g(f"s_and_b32 s59, s4, 3\ns_lshl2_add_u32 s58, s3, s59\ns_mul_i32 s58, s58, {5*3840}\ns_lshr_b32 s59, s4, 2\ns_mul_i32 s59, s59, 640\ns_add_u32 s58, s58, s59")
    g("s_mul_i32 s59, s6, 160\ns_add_u32 s59, s59, s58\ns_add_u32 s72, s34, s59\ns_addc_u32 s73, s35, 0\ns_mul_i32 s59, s6, 3840\ns_add_u32 s58, s58, s59\ns_add_u32 s68, s34, s58\ns_addc_u32 s69, s35, 0")
    def stouch():
        for i in range(10): g(f"s_load_dword s9, s[68:69], {1280 + 64*i}")
        for i in range(3): g(f"s_load_dword s9, s[72:73], {4*3840 + 1280 + 64*i}")
        g("s_load_dword s28, s[54:55], 12")
    if opt["swk"] == 1: stouch()
    consts(); w_dma_addr(g); chunk_offsets(g); roles()
    if opt["swk"] == 2: stouch()
    g.srd(12, 34, 640*3840); g.srd(16, 54, WS_END); g.srd(20, 36, 32*800)
    phi_waddr(g, 86)
    g(f"s_lshl_b32 s58, s6, 6\nv_add_u32 v14, s58, v{vL}\nv_lshlrev_b32 v84, 4, v14\nv_cmp_gt_u32 vcc, 200, v14\nv_mov_b32 v15, 0x7ff00000\nv_cndmask_b32 v84, v15, v84, vcc")
    g(f"s_min_u32 s74, s0, 4\nv_lshrrev_b32 v16, 5, v{vL}\nv_lshlrev_b32 v85, 5, v16")
    g("s_lshr_b32 s59, s6, 1\ns_lshl1_add_u32 s58, s74, s59\ns_sub_u32 s58, s58, s7\ns_cselect_b32 s59, 10, 0\ns_add_u32 s58, s58, s59\ns_lshl_b32 s58, s58, 11")
    g(f"s_add_u32 s58, s58, {S[3]}\ns_and_b32 s59, s6, 1\ns_lshl_b32 s59, s59, 2")
    g(f"v_lshl_add_u32 v16, v16, 1, s59\nv_lshrrev_b32 v17, 1, v{vJ}\nv_xor_b32 v16, v16, v17\nv_lshlrev_b32 v16, 4, v16\nv_lshl_add_u32 v16, v{vJ}, 7, v16")
    g(f"v_and_b32 v17, 1, v{vQ}\nv_mul_u32_u24 v17, {SLOT}, v17\nv_add3_u32 v10, v16, v17, s58\nv_xor_b32 v11, 16, v10")
    g(f"v_lshrrev_b32 v14, 5, v{vL}\nv_bfe_u32 v15, v{vL}, 2, 2\nv_lshl_add_u32 v14, v14, 3, v15\ns_lshl_b32 s58, s6, 6\nv_add_u32 v14, s58, v14")
    g(f"v_and_b32 v15, 1, v{vQ}\nv_and_b32 v16, 3, v{vL}\nv_lshl_add_u32 v15, v15, 2, v16")
    g(f"v_and_b32 v16, 1, v15\nv_mul_u32_u24 v16, 40, v16\nv_mul_u32_u24 v17, 80, v14\nv_add_u32 v16, v16, v17\nv_add_u32 v21, {S_PK+32}, v16")
    g(f"v_lshrrev_b32 v17, 1, v15\nv_lshl_add_u32 v16, v17, 3, v16\nv_add_u32 v20, {S_PK}, v16")
    g(f"v_min_u32 v15, 5, v15\nv_mul_u32_u24 v14, 48, v14\nv_lshl_add_u32 v14, v15, 3, v14\nv_add_u32 v22, {M_VX}, v14")
    g(f"s_lshl_b32 s58, s6, 4\nv_lshl_add_u32 v14, v{vQ}, 6, v{vJ}\nv_add_u32 v14, s58, v14\nv_mul_u32_u24 v14, 80, v14\nv_add_u32 v23, {S_PK}, v14")
    g(f"s_mul_i32 s58, s6, 3072\ns_add_u32 s58, s58, {M_VX}\nv_lshl_add_u32 v19, v{vL}, 4, s58")
    g(f"v_and_b32 v14, 31, v{vL}\nv_lshrrev_b32 v15, 5, v{vL}\nv_mad_u32_u24 v14, v15, 24, v14\nv_lshlrev_b32 v18, 4, v14")
    g(f"s_lshl2_add_u32 s71, s4, s6\ns_mul_i32 s71, s71, {4*32*768}\ns_mul_i32 s59, s3, 768\ns_add_u32 s71, s71, s59\ns_add_u32 s71, s71, {OFF_P}")
    g.srd(24, 42, 1280)
    vm = Vm(g); cend = {}
    def chunk(c, sig=None):
        for i, p in enumerate(chunk_dma(c)):
            cend[c] = vm.op(p)
            if i == 1 and sig is not None: vm.wait(cend[sig]); g.fset(F_LAND + sig); g.lite(f"l{sig}")
    g.lite("ebx")
    g("s_setprio 2\ns_barrier")
    chunk(0)
    vm.op(f"s_mul_i32 s58, s4, 3200\ns_lshl_b32 s59, s6, 10\ns_add_u32 m0, s59, {M_WP}\nbuffer_load_dwordx4 v84, s[20:23], s58 offen lds")
    vm.op(f"s_lshl2_add_u32 s58, s74, s6\ns_lshl_b32 s58, s58, 6\nbuffer_load_dwordx4 v[{WRR}:{WRR+3}], v85, s[24:27], s58 offen\nbuffer_load_dwordx4 v[{WRR+4}:{WRR+7}], v85, s[24:27], s58 offen offset:16")
    d1 = chunk_dma(1)
    for p in d1[:2]: vm.op(p)
    g.fwait(F_XR, 14)
    for tau in range(2):
        g(f"ds_read_b128 v[{XR+8*tau}:{XR+8*tau+3}], v10 offset:{2*SLOT*tau}\nds_read_b128 v[{XR+8*tau+4}:{XR+8*tau+7}], v11 offset:{2*SLOT*tau}")
    g.fset(F_ER)
    for p in d1[2:]: cend[1] = vm.op(p)
    g.stamp(2)
    chunk(2, 0)
    g.stamp(1)
    tag()
    g.fwait(F_ER, 14)
    chunk(3, 1); chunk(4, 2)
    g.fwait(F_LAND + 1, 14)
    phi_wload(g, 24, 86)
    chunk(5, 3); chunk(6, 4)
    g.stamp(7)
    wo_setup(9)
    g("v_mov_b32 v81, s28\ns_mov_b32 s8, 0x07060501\ns_mov_b32 s9, 0x07060502\ns_mov_b32 s10, 0x07060503\ns_mov_b32 s11, 0x07060500\ns_mov_b32 s68, 0xffffff\ns_mov_b32 s69, 0xffffff")
    g.fwait(F_REL + 0, 14); chunk(7, 5)
    g.fwait(F_REL + 1, 14); chunk(8, 6)
    g.fwait(F_REL + 2, 14); chunk(9, 7)
    g.stamp(8)
    items = []
    def dma_items(c, need, sig):
        items.append(lambda: g(g.fget_t(need, 80)))
        items.append(lambda: (g("s_waitcnt lgkmcnt(0)"), g.fcheck(need, 80), 0)[-1])
        for i, p in enumerate(chunk_dma(c)):
            def f(i=i, p=p):
                cend[c] = vm.op(p)
                if i in sig: vm.wait(cend[sig[i]]); g.fset(F_LAND + sig[i])
            items.append(f)
    dma_items(10, F_KR, {0: 8, 4: 9})
    for c in range(11, ge + 1): dma_items(c, F_REL + c - 6, {})
    g.fwait(F_KR, 14, own=True)
    g.stamp(11, "kr")
    g(f"ds_read_b128 v[{PB}:{PB+3}], v19\nds_read_b128 v[{PB+4}:{PB+7}], v19 offset:1024\nds_read_b64 v[{PB+8}:{PB+9}], v19 offset:2048\ns_waitcnt lgkmcnt(0)")
    g.interleave(items, opt["gap"])
    phi(g, 24, False)
    g.drain()
    for i in range(5):
        for q in range(4): g(cvt(PP+4*i+q, EP+8*i+2*q))
        g(f"ds_write_b128 v23, v[{PP+4*i}:{PP+4*i+3}] offset:{16*i}")
    KA, KB, KD = 104, 200, 24
    ard = lambda kp: tr2(KA + 8*kp, 20, 1280*kp, 1280*kp + 320) + "\n" + tr2(KA + 8*kp + 4, 21, 1280*kp, 1280*kp + 320)
    brd = lambda kp: tr2(KB + 4*kp, 22, 768*kp, 768*kp + 192)
    if opt["apre"]:
        g.fset(F_PK); g.stamp(3, "phk"); g.fwait(F_PK, 14)
        lg = Lgkm(g)
        for kp in range(4): lg.op(ard(kp))
    vm.wait(cend[11]); g("s_waitcnt lgkmcnt(0)"); g.fset(F_LAND + 11)
    g.stamp(12, "rdy")
    g("s_barrier")
    lg = Lgkm(g); lg.n = 1; ki = {}
    def krd(kp): ki[kp] = lg.op(brd(kp) if opt["apre"] else brd(kp) + "\n" + ard(kp))
    ahead = 4 if opt["apre"] else 2
    for kp in range(ahead): krd(kp)
    for kp in range(4):
        lg.wait(ki[kp])
        g(mfma32(KD + 16, KA + 8*kp + 4, KB + 4*kp, kp == 0)); g(mfma32(KD, KA + 8*kp, KB + 4*kp, kp == 0))
        if kp + ahead < 4: krd(kp + ahead)
    if not opt["apre"]: g.fset(F_PK)
    g("s_mov_b64 exec, s[68:69]")
    for q in range(4): g(f"v_add_u32 v{KD+16+q}, 0x80, v{KD+16+q}")
    for q in range(4):
        for i in range(4): g(f"v_perm_b32 v{KD+4*q+i}, v{KD+4*q+i}, v{KD+16+q if i < 3 else 81}, s{8+i}")
        vm.op(f"buffer_store_dwordx4 v[{KD+4*q}:{KD+4*q+3}], v18, s[16:19], s71 offen sc1")
        if q < 3: g(f"s_add_u32 s71, s71, {32*768}")
    g("s_mov_b64 exec, -1")
    g.stamp(4, "P")
    pst = vm.n
    for c in range(12, ge + 1): vm.wait(cend[c]); g.fset(F_LAND + c)
    for c in range(ge + 1, 15): chunk(c)
    vma = Vm(g, vm.n)
    g("s_cmp_ge_u32 s0, 5\ns_cbranch_scc1 L_E_aux")

    WO, BA, OB = 24, 184, 216
    g(f"v_bfe_u32 v14, v{vL}, 2, 2\nv_and_b32 v16, 3, v{vL}")
    g(f"v_and_b32 v15, 1, v{vQ}\nv_lshl_add_u32 v15, v15, 2, v16\nv_and_b32 v17, 1, v15\nv_lshrrev_b32 v15, 1, v15\nv_lshl_add_u32 v15, v17, 2, v15")
    g(f"v_xor_b32 v17, s6, v14\nv_lshlrev_b32 v17, 6, v17\nv_lshl_add_u32 v15, v15, 3, v17\nv_lshl_add_u32 v15, v14, 8, v15\nv_lshrrev_b32 v16, 5, v{vL}")
    g(f"v_lshl_add_u32 v5, v16, 11, v15\nv_add_u32 v6, {3*SLOT}, v5\nv_mul_u32_u24 v16, {40*256}, v16\nv_add_u32 v7, v15, v16\nv_add_u32 v8, {3*SLOT}, v7")
    g(f"v_add_u32 v18, {6*SLOT}, v5\nv_add_u32 v19, {6*SLOT}, v7")
    def wo_rd(c, st):
        b, base = divmod(S[WSL[c]], 3*SLOT); r = WO + 20*c + 4*st
        if st < 4: return tr2(r, (5, 6, 18)[b], base + 5120*st, base + 5120*st + 1024)
        return tr2(r, (7, 8, 19)[b], base + 4096, base + 4096 + 5120)
    def wo_read(*cs):
        lg = Lgkm(g)
        for c in cs:
            for st in range(5): lg.op(wo_rd(c, st))
        g("s_waitcnt lgkmcnt(8)")
    def wo_dma(c):
        for p in wo_pieces(c, 9): cend[20 + c] = vm.op(p)
    if not opt["apre"]: g.fwait(F_PK, 14)
    vm.wait(pst)
    for c in range(ge + 1, 15): vm.wait(cend[c]); g.fset(F_LAND + c)
    g.lite("wo0"); wo_dma(1); wo_dma(0)
    g.fwait(F_REL + 11, 14); wo_dma(2); wo_dma(3)
    g.fwait(F_REL + 13, 14); wo_dma(4)
    vm.wait(cend[22]); g.fset(F_VS); g.fwait(F_VS, 14)
    wo_read(1, 0, 2)
    vm.wait(cend[24]); g.fset(F_WL); g.fwait(F_WL, 14); g.lite("wl")
    wo_read(3, 4)
    g.fset(F_WOR)
    g(f"v_mov_b32 v20, -1\nv_mov_b32 v21, -1\nv_mov_b32 v22, -1\nv_mov_b32 v23, -1\nv_mul_u32_u24 v14, 1280, v{vQ}\nv_lshl_add_u32 v14, v{vJ}, 4, v14")
    g(f"s_lshr_b32 s58, s6, 1\ns_mul_i32 s58, s58, {256*1280}\ns_and_b32 s59, s6, 1\ns_mul_i32 s59, s59, 5120\ns_add_u32 s58, s58, s59")
    g(f"s_mul_i32 s59, s3, 10240\ns_add_u32 s58, s58, s59\ns_lshl_b32 s59, s0, 8\ns_add_u32 s58, s58, s59\ns_add_u32 s58, s58, {OFF_CN}")
    g("buffer_store_dwordx4 v[20:23], v14, s[16:19], s58 offen sc1")
    g(f"v_lshlrev_b32 v10, 4, v{vL}\ns_lshl_b32 s58, s6, 10\ns_add_u32 s58, s58, {L_SP}\nv_add_u32 v4, s58, v10\nv_add_u32 v10, {S_O}, v10\nv_add_u32 v11, {S_O2-S_O}, v10")
    g(f"v_and_b32 v14, 31, v{vL}\nv_lshrrev_b32 v15, 5, v{vL}\nv_lshlrev_b32 v14, 3, v14\nv_lshl_add_u32 v16, v15, 10, v14\nv_add_u32 v16, {S_O}, v16\nv_add_u32 v17, {S_O2-S_O}, v16")
    g.stamp(5)
    NF = 80; D = 3; HB = 24; TM = opt["tm"]
    seq = [(ks, tau) for ks in range(40 - TM) for tau in range(2)] + [(ks, tau) for tau in range(2) for ks in range(40 - TM, 40)]
    lg = Lgkm(g); idx = {}; pend = {}; checked = set()
    first = {}
    for f, (ks, tau) in enumerate(seq): first.setdefault(ks // 5, f)
    def ord_(f):
        ks, tau = seq[f]; pr, st = divmod(ks, 5)
        if f == 0: g.fwait(F_OS, 14)
        elif first[pr] == f:
            assert pend[pr] <= lg.done
            g.fcheck(F_OS + pr, 14)
        base = (pr % 4) * 10240; r = OB + 4 * (f % 4)
        if st < 4: idx[f] = lg.op(f"ds_read_b128 v[{r}:{r+3}], v{10 + pr//4} offset:{base + (2*st+tau)*1024}")
        else: idx[f] = lg.op(f"ds_read_b64 v[{r}:{r+1}], v{16 + pr//4} offset:{base + 8192 + 256*tau}\nds_read_b64 v[{r+2}:{r+3}], v{16 + pr//4} offset:{base + 8192 + 512 + 256*tau}")
    def epi(tau, pk):
        a = BA + 16*tau; xr = 56 + 16*tau; out = []
        for q in range(16): out.append(f"v_cvt_pk_bf16_f32 v{a+q}, 0, v{a+q}")
        if pk: out += [f"v_pk_add_f32 v[{a+2*q}:{a+2*q+1}], v[{a+2*q}:{a+2*q+1}], v[{xr+2*q}:{xr+2*q+1}]" for q in range(8)]
        else: out += [f"v_add_f32 v{a+q}, v{a+q}, v{xr+q}" for q in range(16)]
        return out + [cvt(HB+8*tau+q, a+2*q) for q in range(8)]
    e0 = epi(0, TM == 0)
    for f in range(D): ord_(f)
    for f in range(NF):
        lg.wait(idx[f])
        ks, tau = seq[f]
        g(mfma32(BA + 16*tau, WO + 4*ks, OB + 4*(f % 4), ks == 0))
        for pr in range(1, 8):
            if first[pr] - 6 == f: pend[pr] = lg.op(g.fget_t(F_OS + pr, 14))
        if f + D < NF: ord_(f + D)
        if 12 <= f < 42 and f % 2 == 0: lg.op(wo_rd(5 + (f - 12) // 10, (f - 12) // 2 % 5))
        if 42 <= f < 58: g(f"v_lshlrev_b32 v{56+2*(f-42)}, 16, v{XR+f-42}\nv_and_b32 v{57+2*(f-42)}, s31, v{XR+f-42}")
        if 58 <= f < 64: g(f"v_mov_b32 v{44+f-58}, 0")
        if TM and f >= NF - TM + 1:
            for _ in range(6 if f < NF - 1 else len(e0)):
                if e0: g(e0.pop(0))
        g.lite(f"b{f}")
    g.stamp(10)
    def stats(tau):
        for q in range(8):
            r = HB + 8*tau + q
            g(f"v_dot2c_f32_bf16 v{44+3*tau}, s66, v{r}\nv_dot2c_f32_bf16 v{45+3*tau}, v{r}, v{r}\nv_dot2c_f32_bf16 v{46+3*tau}, v{WRR+q}, v{r}")
    for l in e0: g(l)
    stats(0)
    for l in epi(1, True): g(l)
    stats(1)
    for i in range(3): g(f"v_permlane32_swap_b32 v{44+i}, v{47+i}")
    for i in range(3): g(f"v_add_f32 v{44+i}, v{44+i}, v{47+i}")
    g("ds_write_b96 v4, v[44:46]\ns_waitcnt lgkmcnt(0) vmcnt(0)\ns_setprio 0\ns_barrier")
    g(f"v_and_b32 v14, 31, v{vL}\nv_lshrrev_b32 v15, 5, v{vL}\ns_lshl_b32 s58, s6, 2\nv_lshl_add_u32 v15, v15, 1, s58\nv_and_b32 v16, 7, v{vL}\nv_xor_b32 v15, v15, v16")
    g(f"v_lshlrev_b32 v15, 4, v15\nv_lshl_add_u32 v14, v14, 8, v15\nv_add_u32 v14, {S_HT}, v14\nv_xor_b32 v15, 16, v14")
    for tau in range(2):
        g(f"ds_write_b128 v14, v[{HB+8*tau}:{HB+8*tau+3}] offset:{8192*tau}\nds_write_b128 v15, v[{HB+8*tau+4}:{HB+8*tau+7}] offset:{8192*tau}")
    g("s_waitcnt lgkmcnt(0)\ns_branch L_B_join")
    g.flush_slow()

    g("L_E_aux:")
    g("s_sub_u32 s58, s0, 5\ns_lshl2_add_u32 s58, s58, s6\ns_mul_i32 s59, s58, 11\ns_lshr_b32 s59, s59, 5\ns_mul_i32 s56, s59, 3\ns_sub_u32 s56, s58, s56\ns_lshl_b32 s56, s56, 8")
    g(f"s_and_b32 s69, s59, 1\ns_lshl2_add_u32 s59, s3, s59\ns_mul_i32 s67, s59, {32*768}\ns_add_u32 s67, s67, s56\ns_add_u32 s67, s67, {OFF_P}\ns_mul_i32 s68, s59, 768\ns_add_u32 s68, s68, s56\ns_add_u32 s68, s68, {OFF_F}")
    g(f"v_mul_u32_u24 v14, 768, v{vQ}\nv_lshl_add_u32 v14, v{vJ}, 4, v14\ns_mov_b32 s8, 0x0c04000c\ns_mov_b32 s9, 0xffffff00\nv_mov_b32 v15, 0x80\nv_mov_b32 v64, s28\nv_mov_b32 v69, s28")
    vma.wait(pst)
    g.stamp(6, "gs")
    R = lambda n: 104 + 4*n
    ld = [f"s_add_u32 s58, s67, {3072*n}\nbuffer_load_dwordx4 v[{R(n)}:{R(n)+3}], v14, s[16:19], s58 offen sc1" for n in range(8)]
    for l in ld: g(l)
    if late:
        g("s_waitcnt vmcnt(8)")
        for c in range(ge + 1, 15): g.fset(F_LAND + c)
    def cons(n):
        r = R(n)
        g(f"v_perm_b32 v17, v{r+1}, v{r}, s8")
        g(f"v_lshl_or_b32 v{(60, 17)[n > 0]}, v{r+2}, 24, v17")
        g(f"v_xor_b32 v16, s28, v{r+3}" if n == 0 else f"v_bitop3_b32 v16, v16, v{r+3}, v64 bitop3:0xf6")
        for i in range(4): g(f"v_and_or_b32 v{(56, 70)[n > 0]+i}, v{r+i}, s9, v15")
        if n > 0:
            for i in range(4): g(f"v_add_f32 v{56+i}, v{56+i}, v{70+i}")
            g("v_add_f32 v60, v60, v17")
    gather(g, ld, lambda n: g(f"v_cmp_ne_u32_sdwa vcc, v{R(n)+3}, v64 src0_sel:BYTE_0 src1_sel:BYTE_0"), cons, lambda: g("v_and_b32 v16, 0xff, v16\nv_cmp_ne_u32 vcc, 0, v16"))
    g("v_mov_b32 v61, v60\nv_permlane32_swap_b32 v56, v57\nv_permlane32_swap_b32 v58, v59\nv_permlane32_swap_b32 v60, v61")
    g("v_add_f32 v60, v60, v61\nv_add_f32 v56, v56, v57\nv_add_f32 v58, v58, v59\nv_mov_b32 v61, v60")
    g("v_permlane16_swap_b32 v56, v58\nv_permlane16_swap_b32 v60, v61\nv_add_f32 v56, v56, v58\nv_add_f32 v60, v60, v61")
    g("v_cvt_pk_bf16_f32 v65, v60, 0\nv_permlane32_swap_b32 v56, v57\nv_mov_b32 v68, v65\nv_cvt_pk_bf16_f32 v66, v56, v57\nv_permlane16_swap_b32 v66, v67\ns_mov_b64 exec, 0xffff")
    g("s_cmp_lg_u32 s69, 0\ns_cbranch_scc1 L_fodd\nbuffer_store_dwordx4 v[64:67], v14, s[16:19], s68 offen sc1\ns_branch L_fdone\nL_fodd:\nbuffer_store_dwordx4 v[66:69], v14, s[16:19], s68 offen sc1\nL_fdone:\ns_mov_b64 exec, -1")
    g.stamp(5, "fp")
    g("s_branch L_aux")

    g("L_G_aux:")
    g("v_mov_b32 v254, 0")
    for k in range(5): g(f"v_dot2c_f32_bf16 v254, v{vW5+k}, v{vW5+k}")
    wave_sum(g, [254], 18)
    g(f"v_sqrt_f32 v254, v254\nv_mul_f32 v254, {opt.get('band', '0x3c800000')}, v254")
    g("L_aux:\ns_cmp_ge_u32 s70, 48\ns_cbranch_scc1 L_red")
    g.srd(20, 44, 640*3072); g.srd(24, 46, 640*3072); g.srd(8, 48, 1536*1280)
    g(f"v_lshrrev_b32 v14, 2, v{vL}\nv_mul_u32_u24 v14, 3072, v14\nv_and_b32 v15, 3, v{vL}\nv_lshl_add_u32 v4, v15, 4, v14\nv_lshlrev_b32 v5, 4, v{vL}")
    g("s_lshl_b32 s67, s70, 6\ns_and_b32 s69, s70, 1\ns_lshl_b32 s69, s69, 4\ns_or_b32 s69, s69, s5\ns_mul_i32 s62, s5, 5120\ns_mul_i32 s68, s70, 40960\ns_add_u32 s68, s68, s62")
    g("v_mov_b32 v24, -1\nv_mov_b32 v25, -1\nv_mov_b32 v26, -1\nv_mov_b32 v27, -1")
    g("s_waitcnt vmcnt(0)\ns_barrier\ns_setprio 0")
    for i in range(5):
        g(f"s_xor_b32 s59, s69, {8*i}" if i < 4 else "s_add_u32 s59, s5, 32")
        g(f"s_mul_i32 s58, s59, {16*3072}\ns_add_u32 s58, s58, s67\ns_lshl_b32 s59, s59, 10\ns_add_u32 m0, s59, {S[0]}\nbuffer_load_dwordx4 v4, s[20:23], s58 offen lds")
        g(f"s_add_u32 m0, s59, {S[2]}\nbuffer_load_dwordx4 v4, s[24:27], s58 offen lds")
    for i in range(5):
        g(f"v_add_u32 v16, {64*i}, v{vL}\nv_mul_u32_u24 v17, 820, v16\nv_lshrrev_b32 v17, 16, v17\nv_lshlrev_b32 v17, 2, v17\nv_xor_b32 v16, v16, v17\nv_lshlrev_b32 v16, 4, v16")
        g(f"s_add_u32 m0, s62, {S[4]+1024*i}\nbuffer_load_dwordx4 v16, s[8:11], s68 offen lds")
    g(f"s_mul_i32 s58, s5, {20*3072}\ns_add_u32 s58, s58, s67\ns_add_u32 s58, s58, {OFF_Y}\nbuffer_store_dwordx4 v[24:27], v4, s[16:19], s58 offen sc1")
    g(f"s_add_u32 s58, s58, {16*3072}\ns_mov_b64 exec, 0xffff\nbuffer_store_dwordx4 v[24:27], v4, s[16:19], s58 offen sc1\ns_mov_b64 exec, -1")
    g("s_waitcnt vmcnt(0)\ns_barrier")
    g("s_cmp_ge_u32 s5, 4\ns_cbranch_scc1 L_ffn_end")
    GU, WD = 120, 200
    g(f"v_bfe_u32 v14, v{vL}, 2, 2\nv_lshl_add_u32 v16, v{vQ}, 3, v14\nv_lshlrev_b32 v6, 6, v16\nv_and_b32 v17, 1, v15\nv_mul_u32_u24 v17, {S[2]}, v17\nv_lshrrev_b32 v18, 1, v15")
    g("v_lshlrev_b32 v18, 3, v18\nv_add3_u32 v6, v6, v17, v18\ns_lshl_b32 s58, s6, 4\nv_add_u32 v6, s58, v6")
    g(f"v_mul_u32_u24 v16, 1280, v16\nv_lshl_add_u32 v16, v15, 4, v16\nv_xor_b32 v17, s6, v14\nv_lshl_add_u32 v16, v17, 6, v16\nv_add_u32 v7, {S[4]}, v16")
    lg = Lgkm(g)
    for n in range(20): lg.op(tr2(GU + 4*n, 6, 2048*n, 2048*n + 256))
    for i in range(5):
        for m in range(2): lg.op(tr2(WD + 8*i + 4*m, 7, 256*i + 8*m, 256*i + 8*m + 5120))
    XSP = 1312
    g(f"v_and_b32 v14, 7, v{vL}\nv_mul_u32_u24 v15, {XSP}, v14\nv_lshl_add_u32 v15, v{vQ}, 4, v15\nv_add_u32 v8, {S[6]}, v15")
    g(f"v_lshrrev_b32 v15, 5, v{vL}\nv_lshlrev_b32 v15, 3, v15\nv_lshl_add_u32 v15, v14, 4, v15\ns_lshl_b32 s58, s6, 7\ns_add_u32 s58, s58, {M_VX}\nv_add_u32 v9, s58, v15")
    g(f"v_lshlrev_b32 v15, 7, v{vQ}\nv_lshl_add_u32 v15, v14, 4, v15\nv_add_u32 v10, {M_VX}, v15")
    g(f"v_bfe_u32 v15, v{vL}, 2, 1\nv_lshl_add_u32 v15, v{vQ}, 1, v15\nv_mul_u32_u24 v15, 3072, v15\nv_and_b32 v16, 3, v{vL}\nv_lshl_add_u32 v11, v16, 4, v15")
    g(f"s_mul_i32 s58, s6, {8*3072}\ns_add_u32 s67, s67, s58\ns_add_u32 s67, s67, {OFF_Y}")
    g("s_mov_b32 s72, 0x00ff00ff\ns_mov_b32 s73, 0x00ff00ff\ns_mov_b32 s74, 0xff\ns_mov_b32 s75, 0xff")
    g(f"s_mul_i32 s58, s6, {2*XSP}\ns_add_u32 s58, s58, {S[6]}\nv_add_u32 v20, s58, v5\nv_mul_u32_u24 v15, {XSP}, v{vQ}\nv_lshl_add_u32 v21, v{vJ}, 4, v15\nv_add_u32 v21, s58, v21")
    g(f"s_lshl_b32 s60, s6, 1\ns_add_u32 s61, s60, 1\nv_cmp_eq_u32 s[62:63], 0, v{vQ}\nv_lshlrev_b32 v22, 4, v{vJ}\nv_mov_b32 v23, {OFF_CN}\ns_movk_i32 s71, 1280")
    g(f"s_lshl_b32 s56, s70, 7\ns_add_u32 s56, s56, {OFF_HY+12}\nv_mov_b32 v18, s28")
    g("s_waitcnt lgkmcnt(0)")
    g.stamp(9, "fw")
    key_wait(g)
    Lm, x = key_merge(g)
    g.stamp(11, "ks")
    g(f"v_not_b32 v15, v{x}\nv_bfe_u32 v15, v15, 9, 5\nv_and_b32 v16, 7, v{x}\nv_lshl_add_u32 v15, v15, 3, v16\nv_mad_u32_u24 v15, v15, s71, v23")
    g("v_readlane_b32 s68, v15, s60\nv_readlane_b32 s69, v15, s61\nv_add_u32 v16, s69, v22\nv_add_u32 v17, s68, v22\nv_cndmask_b32 v16, v16, v17, s[62:63]")
    ld = ["buffer_load_dwordx4 v[108:111], v5, s[16:19], s68 offen sc1", "buffer_load_dwordx4 v[112:115], v5, s[16:19], s69 offen sc1", "buffer_load_dwordx4 v[116:119], v16, s[16:19], 0 offen offset:1024 sc1"]
    for l in ld: g(l)
    key_refine(g, Lm, x)
    gather(g, ld, lambda n: g(f"v_cmp_eq_u32 vcc, -1, v{111+4*n}"), NOP, lambda: g("v_max3_u32 v17, v111, v115, v119\nv_cmp_eq_u32 vcc, -1, v17"), waits=[0, None, None])
    g(f"ds_write_b128 v20, v[108:111]\nds_write_b128 v20, v[112:115] offset:{XSP}\ns_mov_b32 exec_hi, 0\nds_write_b128 v21, v[116:119] offset:1024")
    g("s_cmp_lg_u32 s6, 0\ns_cbranch_scc1 L_noyh\ns_mov_b64 exec, 1\nbuffer_store_dword v18, v5, s[16:19], s56 offen sc1\nL_noyh:\ns_mov_b64 exec, -1\ns_waitcnt lgkmcnt(0)")
    g.stamp(12, "rows")
    g("s_barrier")
    lg = Lgkm(g); xi = {}
    def xrd(n): xi[n] = lg.op(f"ds_read_b128 v[{24+4*n}:{27+4*n}], v8 offset:{64*n}")
    for n in range(8): xrd(n)
    for n in range(20):
        if n % 2 == 0: lg.wait(xi[n + 1])
        g(mfma16(104, GU + 4*n, 24 + 4*n, n == 0))
        if n + 8 < 20: xrd(n + 8)
    for q in range(4): g(f"v_mul_f32 v{112+q}, s64, v{104+q}")
    for q in range(4): g(f"v_exp_f32_e64 v{112+q}, -v{112+q}")
    for q in range(4): g(f"v_permlane16_swap_b32 v{104+q}, v{108+q}")
    for q in range(4): g(f"v_add_f32 v{112+q}, 1.0, v{112+q}")
    for q in range(4): g(f"v_rcp_f32 v{112+q}, v{112+q}")
    for q in (0, 2): g(f"v_pk_mul_f32 v[{104+q}:{105+q}], v[{104+q}:{105+q}], v[{108+q}:{109+q}]")
    for q in (0, 2): g(f"v_pk_mul_f32 v[{104+q}:{105+q}], v[{104+q}:{105+q}], v[{112+q}:{113+q}]")
    g(cvt(108, 104) + "\n" + cvt(109, 106) + "\ns_mov_b64 exec, s[74:75]\nds_write_b64 v9, v[108:109]\ns_mov_b64 exec, -1")
    g("s_waitcnt lgkmcnt(0)\ns_barrier\nds_read_b128 v[100:103], v10\ns_waitcnt lgkmcnt(0)")
    for i in range(10): g(mfma16(24 + 4*i, WD + 4*i, 100, True))
    g("s_mov_b64 exec, s[72:73]")
    for i in range(5):
        for q in range(4): g(cvt(64+4*i+q, 24+8*i+2*q))
        g(f"buffer_store_dwordx4 v[{64+4*i}:{67+4*i}], v11, s[16:19], s67 offen sc1")
        if i < 4: g(f"s_add_u32 s67, s67, {32*3072}")
    g("L_ffn_end:\ns_mov_b64 exec, -1")
    g.stamp(13, "yp")
    g.end()
    g.flush_slow()

    g("L_red:\ns_cmp_ge_u32 s5, 4\ns_cbranch_scc1 L_red_end")
    g("s_sub_u32 s56, s1, 6\ns_lshl2_add_u32 s56, s56, s6\ns_and_b32 s57, s2, 7")
    g.srd(20, 44, 640*3072); g.srd(24, 46, 640*3072); g.srd(8, 48, 1536*1280)
    g(f"v_mul_u32_u24 v14, 21846, v{vL}\nv_lshrrev_b32 v14, 16, v14\nv_mul_u32_u24 v15, {3072-384}, v14\nv_lshlrev_b32 v14, 7, v{vL}\nv_add_u32 v15, v15, v14")
    g(f"s_mul_i32 s58, s56, {7*3072}\ns_mul_i32 s59, s57, 384\ns_add_u32 s58, s58, s59\ns_add_u32 s58, s58, {472*3072}\ns_mov_b64 exec, 0x1fffff")
    g("buffer_load_dword v230, v15, s[20:23], s58 offen\nbuffer_load_dword v231, v15, s[24:27], s58 offen\ns_mov_b64 exec, -1")
    g("s_mul_i32 s58, s56, 10240\ns_mul_i32 s59, s57, 245760\ns_add_u32 s58, s58, s59\nbuffer_load_dword v232, v14, s[8:11], s58 offen")
    g("s_add_u32 s58, s58, 8192\ns_mov_b64 exec, 0xffff\nbuffer_load_dword v233, v14, s[8:11], s58 offen\ns_mov_b64 exec, -1")
    g("s_cmp_ge_u32 s70, 88\ns_cbranch_scc1 L_red_end\ns_sub_u32 s70, s70, 48")
    g.srd(24, 50, 2048*1280)
    g(f"v_and_b32 v14, 1, v{vL}\nv_lshlrev_b32 v14, 4, v14\nv_mov_b32 v15, 0x3f80\nv_lshlrev_b32 v15, v14, v15\nv_bfe_u32 v14, v{vL}, 1, 2")
    for q in range(4): g(f"v_cmp_eq_u32 vcc, {q}, v14\nv_cndmask_b32 v{20+q}, 0, v15, vcc")
    g(f"v_and_b32 v16, 1, v{vQ}\nv_lshlrev_b32 v4, 3, v16\nv_lshlrev_b32 v5, 4, v{vL}\nv_lshlrev_b32 v8, 7, v{vL}")
    g(f"s_lshr_b32 s58, s6, 1\ns_lshl1_add_u32 s67, s70, s58\ns_lshl_b32 s67, s67, 4\ns_add_u32 s68, s67, {OFF_CN}\ns_add_u32 s69, s67, {OFF_CH}")
    g(f"s_lshl2_add_u32 s72, s70, s6\ns_mul_i32 s72, s72, 3072\ns_add_u32 s72, s72, {OFF_Y}\ns_mov_b32 s73, {OFF_HY+12}")
    g("s_and_b32 s58, s6, 1\ns_lshl_b32 s58, s58, 2\ns_lshl_b32 s36, 0x000f000f, s58\ns_mov_b32 s37, 0\ns_mov_b32 s38, -1\ns_mov_b32 s39, 0xffff")
    key_wait(g)
    Lm, x = key_merge(g)
    key_refine(g, Lm, x)
    g.stamp(11)
    g(f"v_not_b32 v15, v{x}\nv_bfe_u32 v15, v15, 3, 11\nv_mul_u32_u24 v6, 1280, v15\nv_add_u32 v6, v6, v4")
    g(f"v_lshrrev_b32 v15, 6, v15\nv_and_b32 v16, 7, v{x}\nv_lshl_add_u32 v15, v15, 3, v16\nv_mul_u32_u24 v15, 1280, v15\nv_add_u32 v7, v15, v4")
    from_key(g, 15, x, 16)
    g.rnd(15, 15)
    g("v_mul_f32 v15, s64, v15\nv_exp_f32_e64 v15, -v15\nv_add_f32 v15, 1.0, v15\nv_rcp_f32 v15, v15")
    g.rnd(10, 15)
    ld = ["buffer_load_dwordx2 v[80:81], v7, s[16:19], s68 offen sc1\nbuffer_load_dwordx2 v[82:83], v7, s[16:19], s69 offen sc1"]
    g("s_mov_b64 exec, s[36:37]"); g(ld[0])
    gather(g, ld, NOP, NOP, lambda: g("v_max_u32 v17, v81, v83\nv_cmp_eq_u32 vcc, -1, v17"), full="s[36:37]")
    for q in range(2):
        g(f"v_lshlrev_b32 v{86+2*q}, 16, v{80+q}\nv_and_b32 v{87+2*q}, s31, v{80+q}\nv_lshlrev_b32 v{90+2*q}, 16, v{82+q}\nv_and_b32 v{91+2*q}, s31, v{82+q}")
    g.stamp(12)
    ld = ["buffer_load_dword v17, v8, s[16:19], s73 offen sc1"]
    g("s_mov_b64 exec, s[38:39]"); g(ld[0])
    gather(g, ld, NOP, NOP, lambda: g("v_cmp_ne_u32 vcc, s28, v17"), full="s[38:39]")
    g("s_mov_b64 exec, -1")
    ld = [f"buffer_load_dwordx4 v[{24+4*n}:{27+4*n}], v5, s[16:19], s72 offen offset:{1024*n} sc1" for n in range(3)]
    for l in ld: g(l)
    gather(g, ld, lambda n: g(f"v_cmp_eq_u32 vcc, -1, v{27+4*n}"), NOP, lambda: g("v_max3_u32 v17, v27, v31, v35\nv_cmp_eq_u32 vcc, -1, v17"), waits=[0, None, None])
    for n in range(3): g(mfma16(72, 20, 24 + 4*n, n == 0))
    for sh in (4, 8):
        for q in range(4): g(f"v_add_f32_dpp v{72+q}, v{72+q}, v{72+q} row_ror:{sh} {DPPM}")
    for q in (0, 2): g(f"v_pk_fma_f32 v[{72+q}:{73+q}], v[{72+q}:{73+q}], v[10:11], v[{86+q}:{87+q}] op_sel_hi:[1,0,1]")
    for q in range(4): g.rnd(72+q, 72+q)
    for q in (0, 2): g(f"v_pk_add_f32 v[{72+q}:{73+q}], v[{72+q}:{73+q}], v[{90+q}:{91+q}]")
    g(cvt(76, 72) + "\n" + cvt(77, 74) + "\ns_mov_b64 exec, s[36:37]\nbuffer_store_dwordx2 v[76:77], v6, s[24:27], s67 offen sc1")
    g("s_or_b32 s70, s70, s6\ns_cbranch_scc1 L_red_end\ns_mov_b64 exec, 1\nv_mov_b32 v17, s28\nbuffer_store_dword v17, v5, s[16:19], 0 offen offset:12 sc1")
    g("L_red_end:\ns_mov_b64 exec, -1")
    g.stamp(13)
    g.end()
    g.flush_slow()

    if opt.get("stamps"):
        g("L_stamps:\ns_waitcnt vmcnt(0)\ns_memrealtime s[98:99]\ns_memtime s[92:93]\ns_waitcnt lgkmcnt(0)\ns_sub_u32 s92, s92, s94\ns_getreg_b32 s93, hwreg(HW_REG_HW_ID)\ns_mov_b32 s91, s98\ns_mov_b32 s76, s96")
        g(f"s_add_u32 s54, s54, {OFF_STAMP}\ns_addc_u32 s55, s55, 0")
        g.srd(16, 54, 1 << 20)
        g("s_lshl_b32 s58, s2, 3\ns_add_u32 s58, s58, s5\ns_lshl_b32 s58, s58, 7\nv_mov_b32 v4, 0\ns_mov_b64 exec, 1")
        if opt.get("lite"):
            for i in range(7): g(f"s_sub_u32 s59, s{78+2*i}, s94\nv_mov_b32 v5, s59\nbuffer_store_dword v5, v4, s[16:19], s58 offen offset:{4*i}")
            g("v_mov_b32 v5, s0\nbuffer_store_dword v5, v4, s[16:19], s58 offen offset:28\ns_endpgm")
        else:
            for i in range(16): g(f"v_mov_b32 v5, s{76+i}\nbuffer_store_dword v5, v4, s[16:19], s58 offen offset:{4*i}")
            for i, r in enumerate((1, 0, 92, 93)): g(f"v_mov_b32 v5, s{r}\nbuffer_store_dword v5, v4, s[16:19], s58 offen offset:{64+4*i}")
            g(f"v_writelane_b32 v{STV}, s92, 15\ns_mov_b64 exec, 0xffff\nv_lshlrev_b32 v4, 2, v{vL}\ns_add_u32 s58, s58, {1<<19}\nbuffer_store_dword v{STV}, v4, s[16:19], s58 offen\ns_endpgm")
    g("L_codeend:")
    lines, nn = hazard.fix(g.lines, verbose=opt.get("verbose"))
    lines, npro, npad = align.fix(lines, KN)
    hdr = "" if opt.get("nohdr") else open("cdna_kernels/" + NAME + ".s.ref").read().split("; Override launch")[0]
    return wrap("\n".join(lines), 256, 512, 163840, vgpr=256, accum=256, sgpr=102, header=hdr), (nn, npro, npad)

DEFAULT = dict(gs=1, swk=2, late=2, gap=16, apre=1, fearly=0, oahead=2, tm=5, allkey=0)
STR_OPTS = ("band",)
def parse(kvs):
    opt = dict(DEFAULT)
    for kv in kvs:
        if "=" in kv:
            k, v = kv.split("="); opt[k] = v if k in STR_OPTS else eval(v)
    return opt
if __name__ == "__main__":
    txt, nn = build(parse(sys.argv[2:]))
    open(sys.argv[1], "w").write(txt)
    print("nops/promoted/padded:", nn, "lines:", txt.count("\n"))
```

```python
import sys
from asmlib import Asm, NAME, KN, wrap
import hazard, align

OHD = 3072
OBLK = 4*OHD
OFF_P   = 0x10000
OFF_F   = OFF_P + 32*4*32*768
OFF_O   = OFF_F + 32*4*768
OFF_ST  = OFF_O + 32*8*OBLK
OFF_KEY = OFF_ST + 32*5*1024
OFF_CN  = OFF_KEY + 4096
OFF_CH  = OFF_CN + 256*1280
OFF_Y   = OFF_CH + 256*1280
OFF_HY  = OFF_Y + 160*48*64
WS_END  = OFF_HY + 48*128
OFF_STAMP = 16 << 20
SLOT = 20480
S = [i*SLOT for i in range(7)]
M_VX = 7*SLOT
M_WP = M_VX + 12288
M_SM = M_WP + 4096
L_FL  = M_SM
F_LAND, F_REL, F_PK, F_XR, F_ER, F_KR, F_PQ, F_WOR, F_WL, F_VS, F_OS = 0, 16, 31, 33, 34, 35, 36, 37, 38, 39, 40
L_MR  = M_SM + 1024
L_TOP = M_SM + 2048
L_SP  = M_VX
CH_SLOT = [0, 1, 2, 3, 4, 5, 6, 0, 1, 2, 4, 5, 6, 0, 1]
CH_TOFF = [1280]*5 + [2560]*5 + [0]*5
WSL = [2, 3, 4, 5, 0, 0, 1, 6]
S_PK, S_PQ, S_O, S_O2, S_HT = S[3], S[6], S[2], S[4], S[4]
LOG2E = 0x3fb8aa3b
SPIN = 1 << 16
STV = 0
DPPM = "row_mask:0xf bank_mask:0xf"

vL, vJ, vQ = 1, 2, 3
vWD = 4
vWR = 9
vFT, vF4 = 12, 13
XF, WB, AC, AC2 = 24, 104, 136, 168
PB, PP = 156, 168
EP, EN = 104, 124
vSC = 248
vW5 = 240

class G(Asm):
    def __init__(s, opt):
        super().__init__(); s.o = opt; s.slow = []; s.items = None
    def __call__(s, text=""):
        if not s.items: return super().__call__(text)
        for l in text.split("\n"):
            super().__call__(l)
            if s.items and l.strip().startswith("v_"):
                s.acc += 2 if l.strip().startswith(("v_exp", "v_mfma")) else 1
                if s.acc >= s.gap:
                    it = s.items; s.items = None; s.acc = 0
                    w = it.pop(0)()
                    while it and w == 0: w = it.pop(0)()
                    s.items = it
    def interleave(s, items, gap): s.items = items; s.gap = gap; s.acc = 0
    def drain(s):
        it = s.items or []; s.items = None
        for f in it: f()
    def srd(s, d, b, n):
        s(f"s_mov_b32 s{d}, s{b}\ns_and_b32 s{d+1}, s{b+1}, 0xffff\ns_mov_b32 s{d+2}, {n}\ns_mov_b32 s{d+3}, 0x20000")
    def lite(s, name):
        L = s.o.get("lite") or []
        if name in L: i = L.index(name); s(f"s_memtime s[{78+2*i}:{79+2*i}]")
    def retries(s, name):
        L = s.o.get("lite") or []
        if name in L: i = L.index(name); s(f"s_sub_u32 s{78+2*i}, {SPIN}, s57\ns_mul_i32 s{78+2*i}, s{78+2*i}, 100\ns_add_u32 s{78+2*i}, s{78+2*i}, s94")
    def stamp(s, n, name=None):
        if name: s.lite(name)
        if s.o.get("stamps") == 1 and not s.o.get("lite"):
            s(f"s_memrealtime s[98:99]\ns_memtime s[100:101]\ns_waitcnt lgkmcnt(0)\ns_mov_b32 s{76+n}, s98\ns_sub_u32 s100, s100, s94\nv_writelane_b32 v{STV}, s100, {n}")
    def end(s):
        s("s_branch L_stamps" if s.o.get("stamps") else "s_endpgm")
    def rnd(s, d, x):
        s(f"v_cvt_pk_bf16_f32 v{d}, 0, v{x}")
    def ln_scalars(s, sm, sq, nm, rs, t):
        s(f"v_mul_f32 v{sm}, 0xbacccccd, v{sm}\nv_mul_f32 v{sq}, 0x3acccccd, v{sq}")
        s(f"v_fma_f32 v{t}, -v{sm}, v{sm}, v{sq}\nv_max_f32 v{t}, 0, v{t}")
        s.rnd(t, t)
        s(f"v_add_f32 v{t}, 0x3727c5ac, v{t}")
        s.rnd(t, t)
        s(f"v_sqrt_f32 v{t}, v{t}")
        s.rnd(nm, sm); s.rnd(t, t)
        s(f"v_rcp_f32 v{rs}, v{t}")
    def fset_t(s, n): return f"ds_write_b32 v{vFT}, v{vFT} offset:{16*n}"
    def fget_t(s, n, vT): return f"ds_read_b32 v{vT}, v{vF4} offset:{16*n}"
    def fset(s, n): s(s.fset_t(n))
    def fwait(s, n, vT, own=False):
        L = s.lab("fw"); E = s.lab("fwe")
        s(f"s_mov_b32 s57, {SPIN*8}\n{L}:\nds_read_b32 v{vT}, v{vFT if own else vF4} offset:{16*n}\ns_waitcnt lgkmcnt(0)\nv_cmp_eq_u32 vcc, 0, v{vT}")
        s(f"s_cbranch_vccz {E}\ns_sub_u32 s57, s57, 1\ns_cbranch_scc0 {L}\n{E}:")
    def fcmp(s, vT): s(f"v_cmp_eq_u32 vcc, 0, v{vT}")
    def fcheck(s, n, vT, cmp=True):
        L = s.lab("fs"); R = s.lab("fr")
        if cmp: s.fcmp(vT)
        s(f"s_cbranch_vccnz {L}\n{R}:")
        s.slow.append(lambda: (s(f"{L}:"), s.fwait(n, vT), s(f"s_branch {R}")))
    def flush_slow(s):
        sl = s.slow; s.slow = []
        for f in sl: f()

class Vm:
    def __init__(s, g, n=0): s.g = g; s.n = n; s.done = 0
    def op(s, text):
        s.g(text); s.n += text.count("buffer_")
        return s.n
    def wait(s, idx, extra=""):
        assert 0 <= s.n - idx < 64
        if idx > s.done or idx == 0: s.g(f"s_waitcnt vmcnt({s.n - idx}){extra}")
        s.done = max(s.done, idx)

class Lgkm:
    def __init__(s, g): s.g = g; s.n = 0; s.done = 0
    def op(s, text):
        k = text.count("ds_")
        if s.n + k - s.done > 15: s.wait(s.n + k - 15)
        s.g(text); s.n += k
        return s.n
    def wait(s, idx):
        if idx > s.done: s.g(f"s_waitcnt lgkmcnt({s.n - idx})"); s.done = idx

def tr2(r, va, o0, o1):
    return f"ds_read_b64_tr_b16 v[{r}:{r+1}], v{va} offset:{o0}\nds_read_b64_tr_b16 v[{r+2}:{r+3}], v{va} offset:{o1}"
def mfma16(d, a, b, first): return f"v_mfma_f32_16x16x32_bf16 v[{d}:{d+3}], v[{a}:{a+3}], v[{b}:{b+3}], " + ("0" if first else f"v[{d}:{d+3}]")
def mfma32(d, a, b, first): return f"v_mfma_f32_32x32x16_bf16 v[{d}:{d+15}], v[{a}:{a+3}], v[{b}:{b+3}], " + ("0" if first else f"v[{d}:{d+15}]")
def cvt(d, a): return f"v_cvt_pk_bf16_f32 v{d}, v{a}, v{a+1}"

def w_dma_addr(g):
    for i in range(5):
        g(f"v_add_u32 v14, {64*i}, v{vL}\nv_mul_u32_u24 v15, 6554, v14\nv_lshrrev_b32 v15, 16, v15")
        g(f"v_mul_u32_u24 v16, 10, v15\nv_sub_u32 v14, v14, v16")
        g("v_and_b32 v16, 0x13, v15\nv_and_b32 v17, 4, v15\nv_lshl_or_b32 v16, v17, 1, v16\nv_bfe_u32 v17, v15, 3, 1\nv_lshl_or_b32 v16, v17, 2, v16")
        g(f"v_mul_u32_u24 v16, 3840, v16\nv_lshl_add_u32 v{vWD+i}, v14, 4, v16")
        if 0 < i < 4: g(f"v_subrev_u32 v{vWD+i}, {1024*i}, v{vWD+i}")
def w_tr_addr(g):
    g(f"v_lshrrev_b32 v14, 5, v{vL}\nv_lshlrev_b32 v14, 4, v14\nv_bfe_u32 v15, v{vL}, 2, 3\nv_add_u32 v14, v14, v15")
    g(f"v_mul_u32_u24 v14, 160, v14\nv_and_b32 v15, 3, v{vL}\nv_mad_u32_u24 v{vWR}, v15, 40, v14")
    g(f"v_add_u32 v{vWR+1}, {3*SLOT}, v{vWR}\nv_add_u32 v{vWR+2}, {6*SLOT}, v{vWR}")
SK = [40, 41, 32, 33, 75]
def chunk_offsets(g):
    g("s_lshl_b32 s60, s7, 1\ns_add_u32 s60, s60, s6\ns_mul_i32 s61, s4, 160")
    for c in range(5):
        g(f"s_add_u32 s58, s60, {4*c}\ns_cmp_ge_u32 s58, 20\ns_cselect_b32 s59, 20, 0\ns_sub_u32 s58, s58, s59\ns_mul_i32 s58, s58, {32*3840}\ns_add_u32 s{SK[c]}, s58, s61")
def chunk_dma(c):
    so = f"s{SK[c%5]}"; pre = ""
    if CH_TOFF[c]: pre = f"s_add_u32 s67, {so}, {CH_TOFF[c]}\n"; so = "s67"
    pre = f"s_add_u32 m0, s62, {S[CH_SLOT[c]]}\n" + pre
    out = [(pre if i == 0 else "") + f"buffer_load_dwordx4 v{vWD+i}, s[12:15], {so} offen offset:{1024*i} lds" for i in range(4)]
    return out + [f"s_add_u32 m0, s62, {S[CH_SLOT[c]]+4096}\nbuffer_load_dwordx4 v{vWD+4}, s[12:15], {so} offen lds"]

def gemm(g, c0, nch, land, rel, ev=None, pre=None, D=6, NB=8, W=4, vC=14, n0=0):
    ev = ev or {}
    land = {i: c0 + i for i in land}
    lg = Lgkm(g); lg.n = n0; idx = {}; pend = {}; N = 20 * nch
    def rd(f):
        n, T = divmod(f, 5)
        if f % 20 == 0 and n // 4 in land:
            g.fcheck(F_LAND + land[n // 4], vC, False)
        b, off = divmod(S[CH_SLOT[c0 + n // 4]] + (n % 4) * 5120 + 8 * T, 3 * SLOT)
        idx[f] = lg.op(tr2(WB + 4 * (f % NB), vWR + b, off, off + 1280))
    for f in range(D): rd(f)
    if pre: pre(lg)
    for f in range(N):
        if f + D < N: rd(f + D)
        if f % W == 0: lg.wait(idx[f + W - 1])
        if f % 20 == 12 and f // 20 + 1 in land:
            assert pend[f // 20 + 1] <= lg.done
            g.fcmp(vC)
        n, T = divmod(f % 100, 5)
        g(mfma16((AC, AC2)[f // 100] + 4 * T, WB + 4 * (f % NB), XF + 4 * n, n == 0))
        if f % 20 == 8 and f // 20 + 1 in land: pend[f // 20 + 1] = lg.op(g.fget_t(F_LAND + land[f // 20 + 1], vC))
        if f % 20 == 16 and f // 20 in rel: lg.op(g.fset_t(F_REL + c0 + f // 20))
        if f in ev: ev[f](lg)
        g.lite(f"g{20*c0 + f}")

def phi_waddr(g, va):
    g(f"v_bfe_u32 v14, v{vL}, 2, 2\nv_mul_u32_u24 v14, 40, v14\nv_mul_u32_u24 v15, 800, v{vQ}\nv_add_u32 v14, v14, v15\nv_and_b32 v15, 3, v{vL}")
    g(f"v_cmp_eq_u32 vcc, v15, v{vQ}\nv_mov_b32 v15, 3200\nv_cndmask_b32 v14, v15, v14, vcc\nv_add_u32 v{va}, {M_WP}, v14")
def phi_wload(g, PW, va):
    g(f"v_mov_b32 v{PW+50}, 0\nv_mov_b32 v{PW+51}, 0\nv_mov_b32 v{PB+10}, 0\nv_mov_b32 v{PB+11}, 0")
    for T in range(5):
        for i in range(5): g(f"ds_read_b64_tr_b16 v[{PW+10*T+2*i}:{PW+10*T+2*i+1}], v{va} offset:{160*i + 8*T}")
        if T % 2 == 1: g("s_waitcnt lgkmcnt(5)")
def phi(g, PW, pk, mid=None):
    todo = []
    for T in range(5):
        r = PW + 10*T; d = PP + 4*T
        for st in range(3):
            g(mfma16(d, r + 4*st, PB + 4*st, st == 0))
            if T >= 3:
                for _ in range(2): x = todo.pop(0); g.rnd(x, x)
        todo += list(range(d, d + 4))
    def mm(i, first=False):
        if first: g(f"v_max3_f32 v14, v{PP}, v{PP+1}, v{PP+2}\nv_min3_f32 v15, v{PP}, v{PP+1}, v{PP+2}")
        else: g(f"v_max3_f32 v14, v14, v{PP+i}, v{PP+i+1}\nv_min3_f32 v15, v15, v{PP+i}, v{PP+i+1}")
    mm(0, True)
    for i in (3, 5, 7, 9): mm(i)
    for x in todo: g.rnd(x, x)
    for i in (11, 13, 15, 17): mm(i)
    g(f"v_max_f32 v14, v14, v{PP+19}\nv_min_f32 v15, v15, v{PP+19}\nv_mul_f32 v14, s64, v14\nv_mul_f32 v16, s64, v15")
    g.lite("q2" if pk else "k2")
    def args(E, c, neg):
        if pk:
            for i in range(0, 20, 2): g(f"v_pk_fma_f32 v[{E+i}:{E+i+1}], v[{PP+i}:{PP+i+1}], s[64:65], v[{c}:{c+1}] op_sel_hi:[1,0,0] neg_lo:{neg} neg_hi:{neg}")
        else:
            for i in range(20): g(f"v_fma_f32 v{E+i}, v{PP+i}, s64, -v{c}" if E == EP else f"v_fma_f32 v{E+i}, -v{PP+i}, s64, v{c}")
    def finish(E, c):
        for i in range(20): g(f"v_exp_f32 v{E+i}, v{E+i}")
        if pk:
            g(f"v_pk_add_f32 v[{c}:{c+1}], v[{E}:{E+1}], v[{E+2}:{E+3}]")
            for i in range(4, 20, 2): g(f"v_pk_add_f32 v[{c}:{c+1}], v[{c}:{c+1}], v[{E+i}:{E+i+1}]")
            g(f"v_add_f32 v{c}, v{c}, v{c+1}")
        else:
            g(f"v_add_f32 v{c}, v{E}, v{E+1}")
            for i in range(2, 20): g(f"v_add_f32 v{c}, v{c}, v{E+i}")
        g(f"v_rcp_f32 v{c}, v{c}")
        if pk:
            for i in range(0, 20, 2): g(f"v_pk_mul_f32 v[{E+i}:{E+i+1}], v[{E+i}:{E+i+1}], v[{c}:{c+1}] op_sel_hi:[1,0]")
        else:
            for i in range(20): g(f"v_mul_f32 v{E+i}, v{c}, v{E+i}")
    args(EP, 14, "[0,0,1]"); args(EN, 16, "[1,0,0]")
    finish(EP, 14)
    if mid: mid()
    finish(EN, 16)

def sort_consts(g):
    for k in range(3): g(f"v_bfe_u32 v{vSC+k}, v{vL}, {k}, 1\nv_add_u32 v{vSC+k}, -1, v{vSC+k}")
def ce(g, xs, ts, perm, k):
    for x, t in zip(xs, ts): g(f"v_mov_b32_dpp v{t}, v{x} {perm} {DPPM}")
    for x, t in zip(xs, ts): g(f"v_med3_u32 v{x}, v{x}, v{t}, v{vSC+k}")
def resort(g, xs, ts, same=False):
    if same: ce(g, xs, ts, "row_ror:4", 2)
    else:
        for x, t in zip(xs, ts): g(f"v_max_u32_dpp v{t}, v{x}, v{x} row_shl:4 row_mask:0xf bank_mask:0x5")
        for x, t in zip(xs, ts): g(f"v_min_u32_dpp v{t}, v{x}, v{x} row_shr:4 row_mask:0xf bank_mask:0xa")
        xs, ts = ts, xs
    ce(g, xs, ts, "quad_perm:[2,3,0,1]", 1); ce(g, xs, ts, "quad_perm:[1,0,3,2]", 0)
    return xs, ts
def sort8(g, xs, ts):
    ce(g, xs, ts, "quad_perm:[1,0,3,2]", 0)
    ce(g, xs, ts, "quad_perm:[3,2,1,0]", 1); ce(g, xs, ts, "quad_perm:[1,0,3,2]", 0)
    ce(g, xs, ts, "row_half_mirror", 2); ce(g, xs, ts, "quad_perm:[2,3,0,1]", 1); ce(g, xs, ts, "quad_perm:[1,0,3,2]", 0)
def merge_wave(g, x, t, final_sort):
    g(f"v_max_u32_dpp v{x}, v{x}, v{x} row_mirror {DPPM}")
    (x,), (t,) = resort(g, [x], [t])
    g(f"v_mov_b32 v{t}, v{x}\nv_permlane16_swap_b32 v{x}, v{t}\nv_max_u32_dpp v{x}, v{t}, v{x} row_half_mirror {DPPM}")
    (x,), (t,) = resort(g, [x], [t], True)
    g(f"v_mov_b32 v{t}, v{x}\nv_permlane32_swap_b32 v{x}, v{t}\nv_max_u32_dpp v{x}, v{t}, v{x} row_half_mirror {DPPM}")
    if final_sort: (x,), (t,) = resort(g, [x], [t], True)
    return x
def wave_sum(g, xs, t):
    for sh in (1, 2, 4, 8):
        for x in xs: g(f"v_add_f32_dpp v{x}, v{x}, v{x} row_ror:{sh} {DPPM}")
    for sw in (16, 32):
        for x in xs: g(f"v_mov_b32 v{t}, v{x}\nv_permlane{sw}_swap_b32 v{x}, v{t}\nv_add_f32 v{x}, v{x}, v{t}")
def to_key(g, x, t):
    g(f"v_ashrrev_i32 v{t}, 31, v{x}\nv_or_b32 v{t}, 0x80000000, v{t}\nv_xor_b32 v{x}, v{x}, v{t}")
def from_key(g, d, k, t):
    g(f"v_and_b32 v{d}, 0xffffc000, v{k}\nv_or_b32 v{d}, 0x2000, v{d}\nv_ashrrev_i32 v{t}, 31, v{d}\nv_not_b32 v{t}, v{t}\nv_or_b32 v{t}, 0x80000000, v{t}\nv_xor_b32 v{d}, v{d}, v{t}")

def spin(g, loads, consume, final):
    L = g.lab("sp"); E = g.lab("spe")
    g(f"s_mov_b32 s57, {SPIN}\n{L}:")
    for l in loads: g(l)
    g(f"s_sub_u32 s57, s57, 1\ns_cselect_b64 s[10:11], 0, -1\ns_waitcnt vmcnt(0)")
    for n in range(len(loads)): consume(n)
    final()
    g(f"s_and_b64 vcc, vcc, s[10:11]\ns_cbranch_vccnz {L}")

def gather(g, loads, bad, consume, final, waits=None, full="-1", tight=False):
    if tight:
        n = sum(len([x for x in l.split("\n") if x.strip()]) for l in loads)
        assert all(a.strip() == b.strip() for a, b in zip(g.lines[-n:], "\n".join(loads).split("\n")))
        del g.lines[-n:]
        return spin(g, loads, consume, final)
    N = len(loads)
    L = g.lab("ga"); R = g.lab("gr"); E = g.lab("gae")
    g(f"s_mov_b32 s57, {SPIN}\n{L}:")
    for n in range(N):
        w = (N - 1 - n) if waits is None else waits[n]
        if w is not None: g(f"s_waitcnt vmcnt({w})")
        consume(n)
    final()
    g(f"s_cbranch_vccnz {R}\n{E}:")
    def retry():
        g(f"{R}:\ns_sub_u32 s57, s57, 1\ns_cbranch_scc1 {E}")
        if g.o.get("sleep"): g(f"s_sleep {g.o['sleep']}")
        for n in range(N):
            bad(n); g("s_wqm_b64 exec, vcc"); g(loads[n]); g(f"s_mov_b64 exec, {full}")
        g(f"s_waitcnt vmcnt(0)\ns_branch {L}")
    g.slow.append(retry)
NOP = lambda n: None

KR = 100
def key_wait(g):
    g(f"v_lshrrev_b32 v14, 3, v{vL}\nv_lshlrev_b32 v14, 6, v14\nv_lshl_add_u32 v14, v{vL}, 3, v14\ns_mov_b32 s58, {OFF_KEY}\nv_mov_b32 v16, s28\ns_mov_b32 s30, 0")
    ld = [f"buffer_load_dwordx2 v[{KR+2*n}:{KR+2*n+1}], v14, s[16:19], s58 offen offset:{1024*n} sc1" for n in range(4)]
    for l in ld: g(l)
    gather(g, ld, lambda n: g(f"v_cmp_ne_u32 vcc, s28, v{KR+2*n+1}"),
           lambda n: g(f"v_xor_b32 v15, s28, v{KR+1}" if n == 0 else f"v_bitop3_b32 v15, v15, v{KR+2*n+1}, v16 bitop3:0xf6"),
           lambda: g("v_cmp_ne_u32 vcc, 0, v15"), waits=[0, None, None, None], tight=g.o["tight"] & 1)
def key_merge(g):
    L = g.lab("km"); g(f"{L}:")
    g(f"v_max_u32_dpp v92, v{KR+2}, v{KR} row_half_mirror {DPPM}\nv_max_u32_dpp v94, v{KR+6}, v{KR+4} row_half_mirror {DPPM}")
    (a, b), (t, _) = resort(g, [92, 94], [93, 95])
    g(f"v_max_u32_dpp v{a}, v{b}, v{a} row_half_mirror {DPPM}")
    (x,), (t,) = resort(g, [a], [t])
    return L, merge_wave(g, x, t, False)
def key_refine(g, Lm, x):
    R = g.lab("rf"); E = g.lab("rfe")
    g(f"s_cmp_lg_u32 s30, 0\ns_cbranch_scc1 {E}")
    g(f"v_min_u32_dpp v96, v{x}, v{x} quad_perm:[1,0,3,2] {DPPM}\nv_min_u32_dpp v96, v96, v96 quad_perm:[2,3,0,1] {DPPM}\nv_min_u32_dpp v96, v96, v96 row_half_mirror {DPPM}")
    from_key(g, 97, 96, 98)
    g("v_and_b32 v98, 0x7f800000, v97\nv_fmamk_f32 v98, v98, 0xbcc00000, v254\nv_sub_f32 v96, v97, v98")
    to_key(g, 96, 99)
    for n in range(4): g(f"v_cmp_ge_u32 s[{8+2*(n&1)}:{9+2*(n&1)}], v{KR+2*n}, v96\ns_bcnt1_i32_b64 s{12+n}, s[{8+2*(n&1)}:{9+2*(n&1)}]")
    g(f"s_add_u32 s12, s12, s13\ns_add_u32 s14, s14, s15\ns_add_u32 s12, s12, s14\ns_cmp_gt_u32 s12, 8\ns_cbranch_scc1 {R}\n{E}:")
    def slow():
        g(f"{R}:\ns_waitcnt vmcnt(0)\ns_mov_b32 s30, 1\nv_add_f32 v97, v97, v98\nv_mul_u32_u24 v91, 20, v{vL}")
        to_key(g, 97, 99)
        for n in range(4):
            k = KR + 2*n; A = g.lab("ra"); B = g.lab("rb"); P = g.lab("rp"); Q = g.lab("rq")
            g(f"v_cmp_ge_u32 s[8:9], v{k}, v96\nv_cmp_le_u32 vcc, v{k}, v97\ns_and_b64 s[8:9], s[8:9], vcc\n{A}:\ns_cmp_eq_u64 s[8:9], 0\ns_cbranch_scc1 {B}")
            g(f"s_ff1_i32_b64 s10, s[8:9]\ns_bitset0_b64 s[8:9], s10\nv_readlane_b32 s11, v{k}, s10")
            g(f"s_not_b32 s12, s11\ns_bfe_u32 s12, s12, 0x50009\ns_lshl_b32 s12, s12, 3\ns_and_b32 s13, s11, 7\ns_add_u32 s12, s12, s13\ns_mul_i32 s12, s12, 1280\ns_add_u32 s12, s12, {OFF_CN}")
            g(f"s_mov_b32 s57, {SPIN}\n{P}:\nbuffer_load_dwordx4 v[84:87], v91, s[16:19], s12 offen sc1\nbuffer_load_dword v88, v91, s[16:19], s12 offen offset:16 sc1\ns_waitcnt vmcnt(0)")
            g(f"v_max3_u32 v89, v84, v85, v86\nv_max3_u32 v89, v89, v87, v88\nv_cmp_eq_u32 vcc, -1, v89\ns_cbranch_vccz {Q}\ns_sub_u32 s57, s57, 1\ns_cbranch_scc0 {P}\n{Q}:\nv_mov_b32 v89, 0")
            for i in range(5): g(f"v_dot2c_f32_bf16 v89, v{vW5+i}, v{84+i}")
            wave_sum(g, [89], 90); to_key(g, 89, 90)
            g(f"s_and_b32 s11, s11, 0x3fff\nv_and_b32 v89, 0xffffc000, v89\nv_or_b32 v89, s11, v89\ns_lshl_b64 s[14:15], 1, s10\ns_mov_b64 exec, s[14:15]\nv_mov_b32 v{k}, v89\ns_mov_b64 exec, -1\ns_branch {A}\n{B}:")
        sort8(g, [KR + 2*n for n in range(4)], [KR + 2*n + 1 for n in range(4)])
        g(f"s_branch {Lm}")
    g.slow.append(slow)

def build(opt):
    g = G(opt)
    g("s_cmp_ge_u32 s2, 256\ns_cbranch_scc0 L_go\ns_endpgm\nL_go:")
    g("s_load_dwordx16 s[32:47], s[0:1], 0\ns_load_dwordx8 s[48:55], s[0:1], 64")
    if opt.get("stamps"): g("s_memrealtime s[96:97]\ns_memtime s[94:95]")
    if opt.get("lite"):
        for i in range(78, 92, 2): g(f"s_mov_b32 s{i}, 0")
    g(f"v_lshrrev_b32 v14, 6, v0\nv_and_b32 v{vL}, 63, v0\nv_readfirstlane_b32 s5, v14\ns_lshr_b32 s57, s2, 3")
    g("s_cmp_lg_u32 s5, 7\ns_cbranch_scc1 L_nopf")
    g(f"s_getpc_b64 s[20:21]\nL_pc:\ns_sub_u32 s20, s20, L_pc-{KN}\ns_subb_u32 s21, s21, 0\ns_and_b32 s21, s21, 0xffff\ns_mov_b32 s22, L_codeend-{KN}\ns_mov_b32 s23, 0x20000")
    g(f"s_lshl_b32 s58, s57, 7\nv_lshlrev_b32 v14, 12, v{vL}\ns_mov_b64 exec, 0xffff\nbuffer_load_dword v230, v14, s[20:23], s58 offen\ns_mov_b64 exec, -1")
    g(f"v_lshlrev_b32 v18, 4, v{vL}\nv_add_u32 v18, {L_FL}, v18\nv_mov_b32 v14, 0\nv_mov_b32 v15, 0\nv_mov_b32 v16, 0\nv_mov_b32 v17, 0\nds_write_b128 v18, v[14:17]\nL_nopf:")
    g("s_and_b32 s3, s2, 6\ns_lshl_b32 s3, s3, 2\ns_and_b32 s58, s57, 7\ns_add_u32 s3, s3, s58")
    g("s_and_b32 s4, s2, 1\ns_lshl_b32 s4, s4, 2\ns_lshr_b32 s58, s57, 3\ns_add_u32 s4, s4, s58")
    g("s_mul_i32 s7, s4, 5\ns_lshl1_add_u32 s7, s3, s7\ns_mul_i32 s58, s7, 205\ns_lshr_b32 s58, s58, 11\ns_mul_i32 s58, s58, 10\ns_sub_u32 s7, s7, s58")
    g("s_and_b32 s6, s5, 3\ns_cmp_ge_u32 s5, 4\ns_cbranch_scc1 L_E")

    def consts():
        if opt.get("stamps") and not opt.get("lite"):
            for i in range(77, 92): g(f"s_mov_b32 s{i}, 0")
        g(f"v_and_b32 v{vJ}, 15, v{vL}\nv_lshrrev_b32 v{vQ}, 4, v{vL}")
        g(f"s_mov_b32 s31, 0xffff0000\ns_mul_i32 s62, s6, 5120\ns_mov_b32 s64, {LOG2E}\ns_mov_b32 s65, {LOG2E}\ns_mov_b32 s66, 0x3f803f80")
        g(f"s_lshl_b32 s58, s6, 2\ns_add_u32 s58, s58, {L_FL}\nv_mov_b32 v{vFT}, s58\nv_and_b32 v14, 3, v{vL}\nv_lshlrev_b32 v14, 2, v14\nv_add_u32 v{vF4}, {L_FL}, v14")
    def roles():
        g("s_bitcmp1_b32 s3, 0\ns_mov_b32 s58, 0x43765210\ns_cselect_b32 s58, 0x43276510, s58\ns_mov_b32 s59, 0x00400000\ns_cselect_b32 s59, 0x00088400, s59")
        g("s_lshl_b32 s56, s4, 2\ns_lshr_b32 s58, s58, s56\ns_and_b32 s0, s58, 7\ns_lshr_b32 s59, s59, s56\ns_and_b32 s1, s59, 15\ns_bfe_u32 s59, s3, 0x20001\ns_add_u32 s1, s1, s59")
        g("s_and_b32 s59, s2, 7\ns_mul_i32 s70, s59, 6\ns_mul_i32 s59, s59, 5\ns_add_u32 s59, s59, 42")
        g("s_cmp_lt_u32 s1, 6\ns_cselect_b32 s70, s70, s59\ns_add_u32 s70, s70, s1\ns_cmp_eq_u32 s1, 11\ns_cselect_b32 s70, 88, s70")
    def tag():
        g("s_mul_i32 s28, s28, 0x9e3779b5\ns_add_u32 s28, s28, 0x7f4a7c15")
    def prod(i, d):
        if i == 0: return f"s_mov_b32 s{d}, s4\n"
        return f"s_and_b32 s{d}, s3, 7\ns_add_u32 s{d}, s{d}, {i}\ns_cmp_ge_u32 s{d}, 8\ns_addc_u32 s{d}, s{d}, s4\ns_and_b32 s{d}, s{d}, 7\n"
    def wo_setup(va):
        g(f"v_bfe_u32 v14, v{vL}, 2, 2\nv_xor_b32 v15, v14, v{vQ}\nv_lshlrev_b32 v15, 6, v15\nv_and_b32 v16, 3, v{vL}\nv_lshl_add_u32 v15, v16, 4, v15\nv_mul_u32_u24 v17, 1280, v{vQ}\nv_add_u32 v{va}, v15, v17")
        g("s_mul_i32 s29, s6, 25600\ns_lshl_b32 s58, s0, 8\ns_add_u32 s29, s29, s58")
        g.srd(24, 38, 640*1280)
    def wo_pieces(c, va):
        out = []
        for i in range(5):
            t = prod(c, 30) + f"s_mul_i32 s30, s30, {80*1280}\ns_add_u32 s30, s30, s29\n" if i == 0 else f"s_add_u32 s30, s30, {4*1280}\n"
            out.append(f"s_add_u32 m0, s62, {S[WSL[c]]+1024*i}\n" + t + f"buffer_load_dwordx4 v{va}, s[24:27], s30 offen lds")
        return out

    def poison():
        g(f"v_mov_b32 v20, -1\nv_mov_b32 v21, -1\nv_mov_b32 v22, -1\nv_mov_b32 v23, -1\nv_mul_u32_u24 v14, 1280, v{vQ}\nv_lshl_add_u32 v14, v{vJ}, 4, v14")
        g(f"s_lshr_b32 s58, s6, 1\ns_mul_i32 s58, s58, {256*1280}\ns_and_b32 s59, s6, 1\ns_mul_i32 s59, s59, 5120\ns_add_u32 s58, s58, s59")
        g(f"s_mul_i32 s59, s3, 10240\ns_add_u32 s58, s58, s59\ns_lshl_b32 s59, s0, 8\ns_add_u32 s58, s58, s59\ns_add_u32 s58, s58, {OFF_CN}")
        g("buffer_store_dwordx4 v[20:23], v14, s[16:19], s58 offen sc1")

    NX = 5
    g(f"v_lshrrev_b32 v14, 3, v{vL}\nv_and_b32 v15, 7, v{vL}\nv_lshrrev_b32 v16, 1, v14\nv_xor_b32 v15, v15, v16\nv_lshlrev_b32 v15, 4, v15")
    g(f"v_mul_u32_u24 v14, 1280, v14\nv_add_u32 v18, v14, v15\nv_xor_b32 v15, 64, v15\nv_add_u32 v19, v14, v15\nv_add_u32 v19, {8*1280-1024}, v19")
    g(f"s_lshl2_add_u32 s67, s3, s6\ns_mul_i32 s67, s67, 20480\ns_mov_b32 s10, {2048*1280}\ns_mov_b32 s11, 0x20000\ns_mul_i32 s63, s6, {SLOT}\ns_add_u32 s63, s63, {S[3]}")
    g("s_lshl_b32 s68, s7, 7\ns_add_u32 s68, s68, s67\ns_add_u32 s69, s67, 1280\ns_waitcnt lgkmcnt(0)\ns_mov_b32 s8, s32\ns_and_b32 s9, s33, 0xffff")
    def xdma(i):
        g(f"s_add_u32 m0, s63, {2048*i}\ns_add_u32 s58, s68, 128\nbuffer_load_dwordx4 v18, s[8:11], s68 offen lds\nbuffer_load_dwordx4 v19, s[8:11], s68 offen offset:1024 lds")
        if i != 9: g("s_cmp_eq_u32 s58, s69\ns_cselect_b32 s68, s67, s58")
    g.lite("ka")
    for i in range(NX): xdma(i)
    g.lite("xi")
    consts(); w_tr_addr(g)
    g(f"v_lshrrev_b32 v14, 1, v{vJ}\nv_xor_b32 v14, v14, v{vQ}\nv_lshlrev_b32 v14, 4, v14\nv_lshl_add_u32 v14, v{vJ}, 7, v14\nv_add_u32 v20, s63, v14\nv_xor_b32 v21, 64, v20")
    g(f"s_lshl_b32 s58, s6, 4\nv_lshl_add_u32 v14, v{vQ}, 6, v{vJ}\nv_add_u32 v23, s58, v14")
    g(f"v_mul_u32_u24 v14, 48, v23\nv_add_u32 v247, {M_VX}, v14\ns_mul_i32 s58, s6, 3072\ns_add_u32 s58, s58, {M_VX}\nv_lshl_add_u32 v246, v{vL}, 4, s58")
    g(f"v_mov_b32 v{PB+10}, s66\nv_mov_b32 v{PB+11}, s66\ns_mov_b32 s72, 0x3f80\ns_mov_b32 s73, 0x3f800000")
    roles(); phi_waddr(g, 22); sort_consts(g)
    g.srd(16, 54, WS_END); g.srd(20, 42, 1280); g(f"v_mul_u32_u24 v245, 20, v{vL}")
    g("v_mov_b32 v14, 0\nv_mov_b32 v16, 0")
    lg = Lgkm(g); xi = {}
    for i in range(11):
        if i < 10:
            if i + NX < 10: xdma(i + NX)
            if i + NX == 9: g("s_barrier")
            g(f"s_waitcnt vmcnt({2*(min(9, i + NX) - i)})")
            g.lite(f"x{i}")
            xi[i] = lg.op(f"ds_read_b128 v[{XF+8*i}:{XF+8*i+3}], v20 offset:{2048*i}\nds_read_b128 v[{XF+8*i+4}:{XF+8*i+7}], v21 offset:{2048*i}")
            if i == 9: lg.op(g.fset_t(F_XR))
        if i > 0:
            lg.wait(xi[i-1])
            for r in range(XF + 8*i - 8, XF + 8*i): g(f"v_dot2c_f32_bf16 v14, s66, v{r}\nv_dot2c_f32_bf16 v16, v{r}, v{r}")
    g.stamp(1, "x")
    g("s_load_dword s28, s[54:55], 12")
    g("v_permlane32_swap_b32 v14, v16\nv_add_f32 v14, v14, v16\nv_mov_b32 v16, v14\nv_permlane16_swap_b32 v14, v16\nv_add_f32 v14, v14, v16\nv_mov_b32 v16, v14\nv_permlane32_swap_b32 v14, v16")
    g.ln_scalars(14, 16, 18, 19, 15)
    def norm(n):
        T_ = 136 + 8*(n & 1)
        for q in range(4): g(f"v_dot2_f32_bf16 v{T_+2*q}, v{XF+4*n+q}, s72, v18\nv_dot2_f32_bf16 v{T_+2*q+1}, v{XF+4*n+q}, s73, v18")
        for q in range(8): g.rnd(T_+q, T_+q)
        for q in range(4): g(f"v_pk_mul_f32 v[{T_+2*q}:{T_+2*q+1}], v[{T_+2*q}:{T_+2*q+1}], v[18:19] op_sel:[0,1] op_sel_hi:[1,1]")
        for q in range(4): g(cvt(XF+4*n+q, T_+2*q))
    for n in range(18): norm(n)
    g.stamp(2)
    L0 = opt["l0"]
    g(g.fget_t(F_LAND + L0, 14))
    norm(18)
    g("s_waitcnt lgkmcnt(0)"); g.fcheck(F_LAND + L0, 14)
    def kout(part):
        def f(lg):
            for i in range(4*part, min(10, 4*part + 4)): g(cvt(PB+i, AC+2*i))
            if part < 2: lg.op(f"ds_write_b128 v246, v[{PB+4*part}:{PB+4*part+3}] offset:{1024*part}")
            else: lg.op(f"ds_write_b64 v246, v[{PB+8}:{PB+9}] offset:2048"); lg.op(g.fset_t(F_KR))
        return f
    late = opt["late"]; ge = 14 - late
    gemm(g, 0, 10, range(L0 + 1, 10), (0, 1, 2) + tuple(range(5, ge - 5)), ev={99: kout(0), 101: kout(1), 102: kout(2)}, pre=lambda lg: norm(19))
    for i in range(3):
        for q in range(4*i, min(10, 4*i + 4)): g(cvt(PB+q, AC2+2*q))
        g(f"ds_write_b128 v247, v[{PB+4*i}:{PB+4*i+3}] offset:{16*i}")
    g("s_waitcnt lgkmcnt(0)")
    g.stamp(3, "vd")
    g("s_barrier")
    g.stamp(4, "bkv")
    g(f"buffer_load_dwordx4 v[{vW5}:{vW5+3}], v245, s[20:23], 0 offen\nbuffer_load_dword v{vW5+4}, v245, s[20:23], 0 offen offset:16")
    tag(); wo_setup(253)
    g(f"v_lshrrev_b32 v16, 5, v{vL}\nv_and_b32 v17, 31, v{vL}\ns_add_u32 s58, s62, {S_PQ}\nv_lshl_add_u32 v14, v17, 4, s58")
    g("v_lshl_add_u32 v252, v16, 11, v14\nv_lshl_add_u32 v245, v16, 3, v14")
    g("v_lshrrev_b32 v15, 2, v17\nv_lshlrev_b32 v15, 2, v15\ns_mov_b32 s58, 0x55443120\nv_lshrrev_b32 v15, v15, s58\nv_and_b32 v15, 7, v15")
    g("v_and_b32 v17, 3, v17\nv_lshl_add_u32 v17, v15, 2, v17\nv_mad_u32_u24 v17, v16, 24, v17\nv_lshlrev_b32 v251, 4, v17")
    g(f"s_lshl2_add_u32 s71, s4, s6\ns_mul_i32 s71, s71, 3072\ns_add_u32 s71, s71, {OFF_F}")
    g(f"v_lshlrev_b32 v14, 12, v{vQ}\nv_lshl_add_u32 v14, v23, 4, v14\nv_add_u32 v23, {S_PQ}, v14")
    g(f"s_mul_i32 s72, s3, {8*OBLK}\ns_mul_i32 s58, s6, {OHD}\ns_add_u32 s72, s72, s58\ns_add_u32 s72, s72, {OFF_O}\ns_mul_i32 s69, s4, {OBLK}\ns_add_u32 s69, s69, s72")
    g(f"v_lshlrev_b32 v4, 4, v{vL}\ns_lshl_b32 s58, s6, 11\ns_add_u32 s58, s58, {S_O}\nv_add_u32 v6, s58, v4\nv_add_u32 v7, {S_O2-S_O}, v6")
    g(f"s_lshl_b32 s58, s6, 9\ns_add_u32 s58, s58, {8192+S_O}\nv_lshl_add_u32 v8, v{vL}, 3, s58\nv_add_u32 v5, {S_O2-S_O}, v8\nv_cmp_le_u32 s[74:75], 32, v{vL}")
    phi_wload(g, 188, 22); g("s_waitcnt lgkmcnt(0)")
    gemm(g, 10, 5, range(2, 5), (1, 2, 3))
    g.stamp(5)
    g(g.fget_t(F_REL + 12, 20))
    for i in range(10): g(cvt(PB+i, AC+2*i))
    planes = ((EP, EP+2, EP+4, EP+6), (EP+8, EP+10, EP+12, EP+14), (EN, EN+2, EN+4, EN+6), (EN+8, EN+10, EN+12, EN+14), (EP+16, EP+18, EN+16, EN+18))
    def qput(pls):
        if pls[0] == 0: g("s_waitcnt lgkmcnt(0) vmcnt(0)"); g.fcheck(F_REL + 12, 20)
        for pl in pls:
            for q in range(4): g(cvt(PP+4*pl+q, planes[pl][q]))
            g(f"ds_write_b128 v23, v[{PP+4*pl}:{PP+4*pl+3}] offset:{1024*pl}")
    g.lite("q1"); phi(g, 188, True, (lambda: qput((0, 1))) if opt["sm"] & 1 else None); g.lite("q4")
    QB, FA, OD = 24, 48, 64
    for r in (QB+10, QB+11, QB+22, QB+23, 98, 99): g(f"v_mov_b32 v{r}, 0")
    ld = [f"buffer_load_dwordx4 v[{FA+4*q}:{FA+4*q+3}], v251, s[16:19], s71 offen offset:{768*q} sc1" for q in range(4)]
    qput((2, 3, 4) if opt["sm"] & 1 else (0, 1, 2, 3, 4))
    g.fset(F_PQ); g.lite("q5")
    for l in ld: g(l)
    g.fwait(F_PQ, 15)
    for tau in range(2):
        r = QB + 12*tau
        g(f"ds_read_b128 v[{r}:{r+3}], v252 offset:{512*tau}\nds_read_b128 v[{r+4}:{r+7}], v252 offset:{1024+512*tau}\nds_read_b64 v[{r+8}:{r+9}], v245 offset:{4096+512*tau}")
    g.stamp(6, "phq")
    g("v_mov_b32 v107, s28")
    FT = (FA, FA+7, FA+8, FA+15)
    gather(g, ld, lambda n: g(f"v_cmp_ne_u32 vcc, s28, v{FT[n]}"),
           lambda n: g(f"v_xor_b32 v15, s28, v{FA}" if n == 0 else f"v_bitop3_b32 v15, v15, v{FT[n]}, v107 bitop3:0xf6"),
           lambda: g("v_cmp_ne_u32 vcc, 0, v15"), waits=[0, None, None, None])
    g(f"v_lshl_or_b32 v96, v{FA+6}, 16, v{FA+1}\nv_lshl_or_b32 v97, v{FA+14}, 16, v{FA+9}\ns_waitcnt lgkmcnt(0)")
    g.retries("rF"); g.stamp(7, "F")
    for tau in range(2):
        d = OD + 16*tau; b = QB + 12*tau
        g(mfma32(d, FA+2, b, True)); g(mfma32(d, FA+10, b+4, False)); g(mfma32(d, 96, b+8, False))
    for tau in range(2):
        d = OD + 16*tau; o = 100 + 8*tau
        g.rnd(d+12, d+12); g(f"v_add_f32 v{d+12}, 0x358637bd, v{d+12}"); g.rnd(d+12, d+12); g(f"v_rcp_f32 v{d+12}, v{d+12}")
        for i in range(8): g.rnd(d+i, d+i)
        if tau == 0:
            for i in range(8): g(f"v_mul_f32 v{d+i}, v{d+12}, v{d+i}")
        else:
            for i in range(0, 8, 2): g(f"v_pk_mul_f32 v[{d+i}:{d+i+1}], v[{d+i}:{d+i+1}], v[{d+12}:{d+13}] op_sel_hi:[1,0]")
        for i in range(4): g(cvt(o+i, d+2*i))
        g(f"buffer_store_dwordx4 v[{o}:{o+3}], v4, s[16:19], s69 offen offset:{1024*tau} sc1")
    d = OD + 8
    for i in range(5): g(f"v_cndmask_b32 v{d+i}, v{d+i}, v{d+16+i}, s[74:75]")
    for i in range(4): g.rnd(d+i, d+i)
    for i in (0, 2): g(f"v_pk_mul_f32 v[{d+i}:{d+i+1}], v[{d+i}:{d+i+1}], v[{d+4}:{d+5}] op_sel_hi:[1,0]")
    g(cvt(104, d)); g(cvt(105, d+2))
    g("v_add3_u32 v106, s28, v100, v101\nv_add3_u32 v106, v106, v102, v103\nv_add3_u32 v106, v106, v108, v109\nv_add3_u32 v106, v106, v110, v111\nv_add3_u32 v106, v106, v104, v105")
    g("buffer_store_dwordx4 v[104:107], v4, s[16:19], s69 offen offset:2048 sc1")
    g.stamp(8, "opub")
    g("s_cmp_ge_u32 s0, 5\ns_cbranch_scc1 L_G_aux")

    def o_put(i, a, b, c):
        base = (i % 4) * 10240
        g(f"ds_write_b128 v{6 + i//4}, v[{a}:{a+3}] offset:{base}\nds_write_b128 v{6 + i//4}, v[{b}:{b+3}] offset:{base+1024}\nds_write_b64 v{(8, 5)[i//4]}, v[{c}:{c+1}] offset:{base}")
        g.fset(F_OS + i)
    g.fwait(F_WOR, 15)
    g.lite("wor"); o_put(0, 100, 108, 104); g.lite("op0")
    vm = Vm(g); oend = {}
    for c in (5, 6, 7):
        if c == 7: g.fwait(F_OS, 15)
        for p in wo_pieces(c, 253): vm.op(p)
    for i in range(1, 8): g(prod(i, 58) + f"s_mul_i32 s58, s58, {OBLK}\ns_add_u32 s{35+i}, s58, s72")
    vm.wait(0)
    g.stamp(9, "oh")
    OR = lambda i: 140 + 12*i
    def o_ld(i): return "\n".join(f"buffer_load_dwordx4 v[{OR(i)+4*q}:{OR(i)+4*q+3}], v4, s[16:19], s{35+i} offen offset:{1024*q} sc1" for q in range(3))
    for i in range(1, 8):
        r = OR(i)
        while len(oend) < min(7, i + opt["oahead"][i > 1]):
            nx = len(oend) + 1
            oend[nx] = vm.op(o_ld(nx))
            if nx == 7: poison(); vm.n += 1
        if i == 1:
            g("v_mov_b32 v125, 0")
            for k in range(5): g(f"v_dot2c_f32_bf16 v125, s66, v{vW5+k}")
            wave_sum(g, [125], 18)
        def cons(n):
            g(f"v_add3_u32 v17, s28, v{r}, v{r+1}")
            for q in range(2, 10, 2): g(f"v_add3_u32 v17, v17, v{r+q}, v{r+q+1}")
        gather(g, [o_ld(i)], NOP, cons, lambda: g(f"v_cmp_ne_u32 vcc, v17, v{r+10}"), waits=[vm.n - oend[i]])
        g.retries(f"r{i}"); g.lite(f"og{i}")
        o_put(i, r, r + 4, r + 8); g.lite(f"op{i}")
        if i % 3 == 2: g("s_waitcnt lgkmcnt(4)")
    g.stamp(10)
    g(f"v_add_u32 v15, {L_SP}, v4\ns_mul_i32 s73, s3, 5120\ns_add_u32 s73, s73, {OFF_ST}\ns_lshl_b32 s58, s0, 10\ns_add_u32 s58, s58, s73\ns_add_u32 s59, s73, 4096")
    g(f"s_lshl_b32 s56, s3, 6\ns_sub_u32 s56, 2047, s56\nv_sub_u32 v60, s56, v{vL}\nv_lshlrev_b32 v60, 3, v60\nv_lshlrev_b32 v61, 3, v{vL}\nv_add_u32 v62, {L_MR}, v4")
    g(f"v_lshlrev_b32 v63, 2, v{vL}\nv_add_u32 v63, {L_TOP}, v63\nv_mov_b32 v65, s28\ns_lshl_b32 s68, s3, 7\ns_add_u32 s68, s68, {OFF_KEY}\ns_mov_b32 s67, 0xffffc000")
    g("s_waitcnt vmcnt(0)\ns_barrier")
    g("s_cmp_lg_u32 s6, 0\ns_cbranch_scc1 L_B_join")
    for i in range(4): g(f"ds_read_b96 v[{24+4*i}:{26+4*i}], v15 offset:{1024*i}")
    g("v_mov_b32 v27, s28\ns_waitcnt lgkmcnt(2)\nv_pk_add_f32 v[24:25], v[24:25], v[28:29]\nv_add_f32 v26, v26, v30\ns_waitcnt lgkmcnt(0)")
    g("v_pk_add_f32 v[32:33], v[32:33], v[36:37]\nv_add_f32 v34, v34, v38\nv_pk_add_f32 v[24:25], v[24:25], v[32:33]\nv_add_f32 v26, v26, v34")
    g("buffer_store_dwordx4 v[24:27], v4, s[16:19], s58 offen sc1")
    g.stamp(11, "st")
    g("s_waitcnt vmcnt(0)"); g.lite("sta")
    ld = [f"buffer_load_dwordx4 v[{40+4*i}:{43+4*i}], v4, s[16:19], s73 offen offset:{1024*i} sc1" for i in range(4)] + ["buffer_load_dwordx4 v[56:59], v4, s[16:19], s59 offen sc1"]
    for l in ld: g(l)
    gather(g, ld, lambda n: g(f"v_cmp_ne_u32 vcc, s28, v{43+4*n}"),
           lambda n: g("v_xor_b32 v15, s28, v43" if n == 0 else f"v_bitop3_b32 v15, v15, v{43+4*n}, v65 bitop3:0xf6"),
           lambda: g("v_cmp_ne_u32 vcc, 0, v15"), waits=[0, None, None, None, None], tight=opt["tight"] & 2)
    g.retries("rst"); g.stamp(12, "sts")
    g("v_pk_add_f32 v[40:41], v[40:41], v[44:45]\nv_pk_add_f32 v[48:49], v[48:49], v[52:53]\nv_pk_add_f32 v[40:41], v[40:41], v[56:57]\nv_pk_add_f32 v[40:41], v[40:41], v[48:49]")
    g("v_add_f32 v42, v42, v46\nv_add_f32 v50, v50, v54\nv_add_f32 v42, v42, v58\nv_add_f32 v42, v42, v50")
    g.ln_scalars(40, 41, 44, 45, 46)
    g("v_fmac_f32 v42, v44, v125\nv_mul_f32 v42, v42, v45")
    to_key(g, 42, 46)
    g("v_and_or_b32 v46, v42, s67, v60\nv_mov_b32 v42, v46\nds_write_b96 v62, v[44:46]")
    sort8(g, [42], [43])
    x = merge_wave(g, 42, 43, True)
    g(f"v_or_b32 v64, v{x}, v{vL}\ns_mov_b64 exec, 0xff")
    g("s_cmp_lg_u32 s0, 0\ns_cbranch_scc1 L_nokey")
    g("buffer_store_dwordx2 v[64:65], v61, s[16:19], s68 offen sc1\nL_nokey:\nds_write_b32 v63, v64\ns_mov_b64 exec, -1\ns_waitcnt lgkmcnt(0)")
    g.stamp(13, "key")
    g("L_B_join:")
    g.srd(24, 50, 2048*1280)
    g(f"s_lshl_b32 s58, s5, 2\ns_add_u32 s58, s58, {L_TOP}\nv_mov_b32 v16, s58\nv_mov_b32 v17, {L_TOP+28}")
    g(f"s_lshl_b32 s58, s5, 3\nv_add_u32 v21, s58, v{vQ}\nv_add_u32 v22, 4, v21")
    def rowaddr(k):
        g(f"v_and_b32 v{84+k}, 7, v{20+k}\nv_xor_b32 v{84+k}, v{84+k}, v{vJ}\nv_lshlrev_b32 v{84+k}, 4, v{84+k}\nv_lshl_add_u32 v{84+k}, v{20+k}, 8, v{84+k}\nv_add_u32 v{84+k}, {S_HT}, v{84+k}")
        g(f"v_lshlrev_b32 v{88+k}, 4, v{20+k}\nv_add_u32 v{88+k}, {L_MR}, v{88+k}")
    rowaddr(1); rowaddr(2)
    g(f"s_lshl3_add_u32 s60, s3, s5\ns_mul_i32 s60, s60, 1280\ns_lshl_b32 s59, s0, 8\ns_add_u32 s60, s60, s59\ns_add_u32 s60, s60, {OFF_CN}")
    g(f"s_add_u32 s61, s60, {256*1280}\ns_mul_i32 s56, s3, {64*1280}\ns_add_u32 s56, s56, s59\nv_lshlrev_b32 v18, 4, v{vJ}")
    g("s_barrier")
    g("ds_read_b32 v20, v16\nds_read_b32 v19, v17\ns_waitcnt lgkmcnt(1)\nv_not_b32 v20, v20\nv_bfe_u32 v20, v20, 3, 6")
    rowaddr(0)
    for k in range(3): g(f"ds_read_b128 v[{24+8*k}:{27+8*k}], v{84+k}\nds_read_b96 v[{28+8*k}:{30+8*k}], v{88+k}")
    for k in range(3):
        h = 24 + 8*k; mr = h + 4; o = 68 + 4*k
        g(f"v_mul_u32_u24 v{80+k}, 1280, v{20+k}\nv_add_u32 v{80+k}, v{80+k}, v18\ns_waitcnt lgkmcnt({4-2*k})")
        for q in range(4): g(f"v_lshlrev_b32 v{48+2*q}, 16, v{h+q}\nv_and_b32 v{49+2*q}, s31, v{h+q}")
        for q in range(4): g(f"v_pk_add_f32 v[{56+2*q}:{57+2*q}], v[{48+2*q}:{49+2*q}], v[{mr}:{mr+1}] op_sel_hi:[1,0]")
        for q in range(8): g.rnd(56+q, 56+q)
        for q in range(4): g(f"v_pk_mul_f32 v[{56+2*q}:{57+2*q}], v[{56+2*q}:{57+2*q}], v[{mr}:{mr+1}] op_sel:[0,1] op_sel_hi:[1,1]")
        if k == 0:
            for q in range(4): g(cvt(64+q, 56+2*q))
            g("s_mov_b64 exec, 0xffff\nbuffer_store_dwordx4 v[64:67], v18, s[16:19], s60 offen sc1\ns_mov_b64 exec, -1")
        for q in range(8): g.rnd(56+q, 56+q)
        for q in range(4): g(f"v_pk_add_f32 v[{56+2*q}:{57+2*q}], v[{56+2*q}:{57+2*q}], v[{48+2*q}:{49+2*q}]")
        for q in range(4): g(cvt(o+q, 56+2*q))
        if k == 0: g(f"s_mov_b64 exec, 0xffff\nbuffer_store_dwordx4 v[{o}:{o+3}], v80, s[24:27], s56 offen sc1\ns_mov_b64 exec, -1")
    g("v_and_b32 v19, -8, v19\nv_cmp_lt_u32 s[62:63], v38, v19\nv_cmp_lt_u32 s[64:65], v46, v19")
    g("s_waitcnt vmcnt(0)\ns_mov_b64 exec, 0xffff\nbuffer_store_dwordx4 v[24:27], v18, s[16:19], s61 offen sc1")
    for k in (1, 2): g(f"s_mov_b64 exec, s[{60+2*k}:{61+2*k}]\nbuffer_store_dwordx4 v[{68+4*k}:{71+4*k}], v{80+k}, s[24:27], s56 offen sc1")
    g("s_mov_b64 exec, -1")
    g.stamp(14)
    g.end()
    g.flush_slow()

    g("L_E:")
    WRR, XR = 232, 240
    consts(); w_dma_addr(g)
    g("s_waitcnt lgkmcnt(0)\ns_load_dword s28, s[54:55], 12")
    chunk_offsets(g); roles()
    g.srd(12, 34, 640*3840); g.srd(16, 54, WS_END); g.srd(20, 36, 32*800)
    phi_waddr(g, 86)
    g(f"s_lshl_b32 s58, s6, 6\nv_add_u32 v14, s58, v{vL}\nv_lshlrev_b32 v84, 4, v14\nv_cmp_gt_u32 vcc, 200, v14\nv_mov_b32 v15, 0x7ff00000\nv_cndmask_b32 v84, v15, v84, vcc")
    g(f"s_min_u32 s74, s0, 4\nv_lshrrev_b32 v16, 5, v{vL}\nv_lshlrev_b32 v85, 5, v16")
    g("s_lshr_b32 s59, s6, 1\ns_lshl1_add_u32 s58, s74, s59\ns_sub_u32 s58, s58, s7\ns_cselect_b32 s59, 10, 0\ns_add_u32 s58, s58, s59\ns_lshl_b32 s58, s58, 11")
    g(f"s_add_u32 s58, s58, {S[3]}\ns_and_b32 s59, s6, 1\ns_lshl_b32 s59, s59, 2")
    g(f"v_lshl_add_u32 v16, v16, 1, s59\nv_lshrrev_b32 v17, 1, v{vJ}\nv_xor_b32 v16, v16, v17\nv_lshlrev_b32 v16, 4, v16\nv_lshl_add_u32 v16, v{vJ}, 7, v16")
    g(f"v_and_b32 v17, 1, v{vQ}\nv_mul_u32_u24 v17, {SLOT}, v17\nv_add3_u32 v10, v16, v17, s58\nv_xor_b32 v11, 16, v10")
    g(f"v_lshrrev_b32 v14, 5, v{vL}\nv_bfe_u32 v15, v{vL}, 2, 2\nv_lshl_add_u32 v14, v14, 3, v15\ns_lshl_b32 s58, s6, 6\nv_add_u32 v14, s58, v14")
    g(f"v_and_b32 v15, 1, v{vQ}\nv_and_b32 v16, 3, v{vL}\nv_lshl_add_u32 v15, v15, 2, v16")
    g(f"v_and_b32 v16, 1, v15\nv_mul_u32_u24 v16, 40, v16\nv_mul_u32_u24 v17, 80, v14\nv_add_u32 v16, v16, v17\nv_add_u32 v21, {S_PK+32}, v16")
    g(f"v_lshrrev_b32 v17, 1, v15\nv_lshl_add_u32 v16, v17, 3, v16\nv_add_u32 v20, {S_PK}, v16")
    g(f"v_min_u32 v15, 5, v15\nv_mul_u32_u24 v14, 48, v14\nv_lshl_add_u32 v14, v15, 3, v14\nv_add_u32 v22, {M_VX}, v14")
    g(f"s_lshl_b32 s58, s6, 4\nv_lshl_add_u32 v14, v{vQ}, 6, v{vJ}\nv_add_u32 v14, s58, v14\nv_mul_u32_u24 v14, 80, v14\nv_add_u32 v23, {S_PK}, v14")
    g(f"s_mul_i32 s58, s6, 3072\ns_add_u32 s58, s58, {M_VX}\nv_lshl_add_u32 v19, v{vL}, 4, s58")
    g(f"v_and_b32 v14, 31, v{vL}\nv_lshrrev_b32 v15, 5, v{vL}\nv_mad_u32_u24 v14, v15, 24, v14\nv_lshlrev_b32 v18, 4, v14")
    g(f"s_lshl2_add_u32 s71, s4, s6\ns_mul_i32 s71, s71, {4*32*768}\ns_mul_i32 s59, s3, 768\ns_add_u32 s71, s71, s59\ns_add_u32 s71, s71, {OFF_P}")
    g.srd(24, 42, 1280)
    vm = Vm(g); cend = {}
    def chunk(c, sig=None):
        for i, p in enumerate(chunk_dma(c)):
            cend[c] = vm.op(p)
            if i == 1 and sig is not None: vm.wait(cend[sig]); g.fset(F_LAND + sig); g.lite(f"l{sig}")
    g.lite("ebx")
    g("s_setprio 2\ns_barrier")
    chunk(0)
    vm.op(f"s_mul_i32 s58, s4, 3200\ns_lshl_b32 s59, s6, 10\ns_add_u32 m0, s59, {M_WP}\nbuffer_load_dwordx4 v84, s[20:23], s58 offen lds")
    vm.op(f"s_lshl2_add_u32 s58, s74, s6\ns_lshl_b32 s58, s58, 6\nbuffer_load_dwordx4 v[{WRR}:{WRR+3}], v85, s[24:27], s58 offen\nbuffer_load_dwordx4 v[{WRR+4}:{WRR+7}], v85, s[24:27], s58 offen offset:16")
    d1 = chunk_dma(1)
    for p in d1[:2]: vm.op(p)
    g.fwait(F_XR, 14)
    for tau in range(2):
        g(f"ds_read_b128 v[{XR+8*tau}:{XR+8*tau+3}], v10 offset:{2*SLOT*tau}\nds_read_b128 v[{XR+8*tau+4}:{XR+8*tau+7}], v11 offset:{2*SLOT*tau}")
    g.fset(F_ER)
    for p in d1[2:]: cend[1] = vm.op(p)
    g.stamp(2)
    chunk(2, 0)
    g.stamp(1)
    tag()
    g.fwait(F_ER, 14)
    chunk(3, 1); chunk(4, 2)
    g.fwait(F_LAND + 1, 14)
    phi_wload(g, 24, 86)
    chunk(5, 3); chunk(6, 4)
    g.stamp(7)
    wo_setup(9)
    g("v_mov_b32 v81, s28\ns_mov_b32 s8, 0x07060501\ns_mov_b32 s9, 0x07060502\ns_mov_b32 s10, 0x07060503\ns_mov_b32 s11, 0x07060500\ns_mov_b32 s68, 0xffffff\ns_mov_b32 s69, 0xffffff")
    g.fwait(F_REL + 0, 14); chunk(7, 5)
    g.fwait(F_REL + 1, 14); chunk(8, 6)
    g.fwait(F_REL + 2, 14); chunk(9, 7)
    g.stamp(8)
    items = []
    def dma_items(c, need, sig):
        items.append(lambda: g(g.fget_t(need, 80)))
        items.append(lambda: (g("s_waitcnt lgkmcnt(0)"), g.fcheck(need, 80), 0)[-1])
        for i, p in enumerate(chunk_dma(c)):
            def f(i=i, p=p):
                cend[c] = vm.op(p)
                if i in sig: vm.wait(cend[sig[i]]); g.fset(F_LAND + sig[i])
            items.append(f)
    dma_items(10, F_KR, {0: 8, 4: 9})
    for c in range(11, ge + 1): dma_items(c, F_REL + c - 6, {})
    g.fwait(F_KR, 14, own=True)
    g.stamp(11, "kr")
    g(f"ds_read_b128 v[{PB}:{PB+3}], v19\nds_read_b128 v[{PB+4}:{PB+7}], v19 offset:1024\nds_read_b64 v[{PB+8}:{PB+9}], v19 offset:2048\ns_waitcnt lgkmcnt(0)")
    g.interleave(items, opt["gap"])
    def kput(pls):
        assert 10 in cend
        for i in pls:
            for q in range(4): g(cvt(PP+4*i+q, EP+8*i+2*q))
            g(f"ds_write_b128 v23, v[{PP+4*i}:{PP+4*i+3}] offset:{16*i}")
    phi(g, 24, False, (lambda: kput((0, 1))) if opt["sm"] & 2 else None)
    g.drain()
    kput((2, 3, 4) if opt["sm"] & 2 else (0, 1, 2, 3, 4))
    KA, KB, KD = 104, 200, 24
    ard = lambda kp: tr2(KA + 8*kp, 20, 1280*kp, 1280*kp + 320) + "\n" + tr2(KA + 8*kp + 4, 21, 1280*kp, 1280*kp + 320)
    brd = lambda kp: tr2(KB + 4*kp, 22, 768*kp, 768*kp + 192)
    vm.wait(cend[11]); g("s_waitcnt lgkmcnt(0)")
    g.stamp(12, "rdy")
    g("s_barrier")
    lg = Lgkm(g); ki = {}
    def krd(kp): ki[kp] = lg.op(brd(kp) + "\n" + ard(kp))
    ahead = 2
    for kp in range(ahead): krd(kp)
    for kp in range(4):
        lg.wait(ki[kp])
        g(mfma32(KD + 16, KA + 8*kp + 4, KB + 4*kp, kp == 0)); g(mfma32(KD, KA + 8*kp, KB + 4*kp, kp == 0))
        if kp + ahead < 4: krd(kp + ahead)
    g.fset(F_PK)
    g("s_mov_b64 exec, s[68:69]")
    for q in range(4): g(f"v_add_u32 v{KD+16+q}, 0x80, v{KD+16+q}")
    for q in range(4):
        for i in range(4): g(f"v_perm_b32 v{KD+4*q+i}, v{KD+4*q+i}, v{KD+16+q if i < 3 else 81}, s{8+i}")
        vm.op(f"buffer_store_dwordx4 v[{KD+4*q}:{KD+4*q+3}], v18, s[16:19], s71 offen sc1")
        if q < 3: g(f"s_add_u32 s71, s71, {32*768}")
    g("s_mov_b64 exec, -1")
    g.stamp(4, "P")
    pst = vm.n
    for c in range(12, ge + 1): vm.wait(cend[c]); g.fset(F_LAND + c)
    for c in range(ge + 1, 15): chunk(c)
    vma = Vm(g, vm.n)
    g("s_cmp_ge_u32 s0, 5\ns_cbranch_scc1 L_E_aux")

    WO, BA, OB = 24, 184, 216
    g(f"v_bfe_u32 v14, v{vL}, 2, 2\nv_and_b32 v16, 3, v{vL}")
    g(f"v_and_b32 v15, 1, v{vQ}\nv_lshl_add_u32 v15, v15, 2, v16\nv_and_b32 v17, 1, v15\nv_lshrrev_b32 v15, 1, v15\nv_lshl_add_u32 v15, v17, 2, v15")
    g(f"v_xor_b32 v17, s6, v14\nv_lshlrev_b32 v17, 6, v17\nv_lshl_add_u32 v15, v15, 3, v17\nv_lshl_add_u32 v15, v14, 8, v15\nv_lshrrev_b32 v16, 5, v{vL}")
    g(f"v_lshl_add_u32 v5, v16, 11, v15\nv_add_u32 v6, {3*SLOT}, v5\nv_mul_u32_u24 v16, {40*256}, v16\nv_add_u32 v7, v15, v16\nv_add_u32 v8, {3*SLOT}, v7")
    g(f"v_add_u32 v18, {6*SLOT}, v5\nv_add_u32 v19, {6*SLOT}, v7")
    def wo_rd(c, st):
        b, base = divmod(S[WSL[c]], 3*SLOT); r = WO + 20*c + 4*st
        if st < 4: return tr2(r, (5, 6, 18)[b], base + 5120*st, base + 5120*st + 1024)
        return tr2(r, (7, 8, 19)[b], base + 4096, base + 4096 + 5120)
    def wo_read(*cs):
        lg = Lgkm(g)
        for c in cs:
            for st in range(5): lg.op(wo_rd(c, st))
        g("s_waitcnt lgkmcnt(8)")
    def wo_dma(c):
        for p in wo_pieces(c, 9): cend[20 + c] = vm.op(p)
    g.fwait(F_PK, 14)
    vm.wait(pst)
    for c in range(ge + 1, 15): vm.wait(cend[c]); g.fset(F_LAND + c)
    g.lite("wo0"); wo_dma(1); wo_dma(0)
    g.fwait(F_REL + 11, 14); wo_dma(2); wo_dma(3)
    g.fwait(F_REL + 13, 14); wo_dma(4)
    vm.wait(cend[24]); g.fset(F_WL); g.fwait(F_WL, 14); g.lite("wl")
    g.fwait(F_PQ, 14)
    wo_read(1, 0, 2, 3, 4)
    g.fset(F_WOR)
    g(f"v_lshlrev_b32 v10, 4, v{vL}\ns_lshl_b32 s58, s6, 10\ns_add_u32 s58, s58, {L_SP}\nv_add_u32 v4, s58, v10\nv_add_u32 v10, {S_O}, v10\nv_add_u32 v11, {S_O2-S_O}, v10")
    g(f"v_and_b32 v14, 31, v{vL}\nv_lshrrev_b32 v15, 5, v{vL}\nv_lshlrev_b32 v14, 3, v14\nv_lshl_add_u32 v16, v15, 10, v14\nv_add_u32 v16, {S_O}, v16\nv_add_u32 v17, {S_O2-S_O}, v16")
    g.stamp(5)
    NF = 80; D = 3; HB = 24; TM = opt["tm"]
    seq = [(ks, tau) for ks in range(40 - TM) for tau in range(2)] + [(ks, tau) for tau in range(2) for ks in range(40 - TM, 40)]
    lg = Lgkm(g); idx = {}; pend = {}; checked = set()
    first = {}
    for f, (ks, tau) in enumerate(seq): first.setdefault(ks // 5, f)
    def ord_(f):
        ks, tau = seq[f]; pr, st = divmod(ks, 5)
        if f == 0: g.fwait(F_OS, 14)
        elif first[pr] == f:
            g.fcheck(F_OS + pr, 14, False)
        base = (pr % 4) * 10240; r = OB + 4 * (f % 4)
        if st < 4: idx[f] = lg.op(f"ds_read_b128 v[{r}:{r+3}], v{10 + pr//4} offset:{base + (2*st+tau)*1024}")
        else: idx[f] = lg.op(f"ds_read_b64 v[{r}:{r+1}], v{16 + pr//4} offset:{base + 8192 + 256*tau}\nds_read_b64 v[{r+2}:{r+3}], v{16 + pr//4} offset:{base + 8192 + 512 + 256*tau}")
    def epi(tau, pk):
        a = BA + 16*tau; xr = 56 + 16*tau; out = []
        for q in range(16): out.append(f"v_cvt_pk_bf16_f32 v{a+q}, 0, v{a+q}")
        if pk: out += [f"v_pk_add_f32 v[{a+2*q}:{a+2*q+1}], v[{a+2*q}:{a+2*q+1}], v[{xr+2*q}:{xr+2*q+1}]" for q in range(8)]
        else: out += [f"v_add_f32 v{a+q}, v{a+q}, v{xr+q}" for q in range(16)]
        return out + [cvt(HB+8*tau+q, a+2*q) for q in range(8)]
    e0 = epi(0, TM == 0)
    for f in range(D): ord_(f)
    for f in range(NF):
        lg.wait(idx[f])
        for pr in range(1, 8):
            if first[pr] - 3 == f: assert pend[pr] <= lg.done; g.fcmp(14)
        ks, tau = seq[f]
        g(mfma32(BA + 16*tau, WO + 4*ks, OB + 4*(f % 4), ks == 0))
        for pr in range(1, 8):
            if first[pr] - 6 == f: pend[pr] = lg.op(g.fget_t(F_OS + pr, 14))
        if f + D < NF: ord_(f + D)
        if 12 <= f < 42 and f % 2 == 0: lg.op(wo_rd(5 + (f - 12) // 10, (f - 12) // 2 % 5))
        if 42 <= f < 58: g(f"v_lshlrev_b32 v{56+2*(f-42)}, 16, v{XR+f-42}\nv_and_b32 v{57+2*(f-42)}, s31, v{XR+f-42}")
        if 58 <= f < 64: g(f"v_mov_b32 v{44+f-58}, 0")
        if TM and f >= NF - TM + 1:
            for _ in range(6 if f < NF - 1 else len(e0)):
                if e0: g(e0.pop(0))
        g.lite(f"b{f}")
    g.stamp(10)
    def stats(tau):
        for q in range(8):
            r = HB + 8*tau + q
            g(f"v_dot2c_f32_bf16 v{44+3*tau}, s66, v{r}\nv_dot2c_f32_bf16 v{45+3*tau}, v{r}, v{r}\nv_dot2c_f32_bf16 v{46+3*tau}, v{WRR+q}, v{r}")
    for l in e0: g(l)
    stats(0)
    for l in epi(1, True): g(l)
    stats(1)
    for i in range(3): g(f"v_permlane32_swap_b32 v{44+i}, v{47+i}")
    for i in range(3): g(f"v_add_f32 v{44+i}, v{44+i}, v{47+i}")
    g("ds_write_b96 v4, v[44:46]\ns_waitcnt lgkmcnt(0) vmcnt(0)\ns_setprio 0\ns_barrier")
    g(f"v_and_b32 v14, 31, v{vL}\nv_lshrrev_b32 v15, 5, v{vL}\ns_lshl_b32 s58, s6, 2\nv_lshl_add_u32 v15, v15, 1, s58\nv_and_b32 v16, 7, v{vL}\nv_xor_b32 v15, v15, v16")
    g(f"v_lshlrev_b32 v15, 4, v15\nv_lshl_add_u32 v14, v14, 8, v15\nv_add_u32 v14, {S_HT}, v14\nv_xor_b32 v15, 16, v14")
    for tau in range(2):
        g(f"ds_write_b128 v14, v[{HB+8*tau}:{HB+8*tau+3}] offset:{8192*tau}\nds_write_b128 v15, v[{HB+8*tau+4}:{HB+8*tau+7}] offset:{8192*tau}")
    g("s_waitcnt lgkmcnt(0)\ns_branch L_B_join")
    g.flush_slow()

    g("L_E_aux:")
    g("s_sub_u32 s58, s0, 5\ns_lshl2_add_u32 s58, s58, s6\ns_mul_i32 s59, s58, 11\ns_lshr_b32 s59, s59, 5\ns_mul_i32 s56, s59, 3\ns_sub_u32 s56, s58, s56\ns_lshl_b32 s56, s56, 8")
    g(f"s_and_b32 s69, s59, 1\ns_lshl2_add_u32 s59, s3, s59\ns_mul_i32 s67, s59, {32*768}\ns_add_u32 s67, s67, s56\ns_add_u32 s67, s67, {OFF_P}\ns_mul_i32 s68, s59, 768\ns_add_u32 s68, s68, s56\ns_add_u32 s68, s68, {OFF_F}")
    g(f"v_mul_u32_u24 v14, 768, v{vQ}\nv_lshl_add_u32 v14, v{vJ}, 4, v14\ns_mov_b32 s8, 0x0c04000c\ns_mov_b32 s9, 0xffffff00\nv_mov_b32 v15, 0x80\nv_mov_b32 v64, s28\nv_mov_b32 v69, s28")
    vma.wait(pst)
    g.stamp(6, "gs")
    R = lambda n: 104 + 4*n
    ld = [f"s_add_u32 s58, s67, {3072*n}\nbuffer_load_dwordx4 v[{R(n)}:{R(n)+3}], v14, s[16:19], s58 offen sc1" for n in range(8)]
    for l in ld: g(l)
    if late:
        g("s_waitcnt vmcnt(8)")
        for c in range(ge + 1, 15): g.fset(F_LAND + c)
    def cons(n):
        r = R(n)
        g(f"v_perm_b32 v17, v{r+1}, v{r}, s8")
        g(f"v_lshl_or_b32 v{(60, 17)[n > 0]}, v{r+2}, 24, v17")
        g(f"v_xor_b32 v16, s28, v{r+3}" if n == 0 else f"v_bitop3_b32 v16, v16, v{r+3}, v64 bitop3:0xf6")
        for i in range(4): g(f"v_and_or_b32 v{(56, 70)[n > 0]+i}, v{r+i}, s9, v15")
        if n > 0:
            for i in range(4): g(f"v_add_f32 v{56+i}, v{56+i}, v{70+i}")
            g("v_add_f32 v60, v60, v17")
    gather(g, ld, lambda n: g(f"v_cmp_ne_u32_sdwa vcc, v{R(n)+3}, v64 src0_sel:BYTE_0 src1_sel:BYTE_0"), cons, lambda: g("v_and_b32 v16, 0xff, v16\nv_cmp_ne_u32 vcc, 0, v16"))
    g.retries("rP")
    g("v_mov_b32 v61, v60\nv_permlane32_swap_b32 v56, v57\nv_permlane32_swap_b32 v58, v59\nv_permlane32_swap_b32 v60, v61")
    g("v_add_f32 v60, v60, v61\nv_add_f32 v56, v56, v57\nv_add_f32 v58, v58, v59\nv_mov_b32 v61, v60")
    g("v_permlane16_swap_b32 v56, v58\nv_permlane16_swap_b32 v60, v61\nv_add_f32 v56, v56, v58\nv_add_f32 v60, v60, v61")
    g("v_cvt_pk_bf16_f32 v65, v60, 0\nv_permlane32_swap_b32 v56, v57\nv_mov_b32 v68, v65\nv_cvt_pk_bf16_f32 v66, v56, v57\nv_permlane16_swap_b32 v66, v67\ns_mov_b64 exec, 0xffff")
    g("s_cmp_lg_u32 s69, 0\ns_cbranch_scc1 L_fodd\nbuffer_store_dwordx4 v[64:67], v14, s[16:19], s68 offen sc1\ns_branch L_fdone\nL_fodd:\nbuffer_store_dwordx4 v[66:69], v14, s[16:19], s68 offen sc1\nL_fdone:\ns_mov_b64 exec, -1")
    g.stamp(5, "fp")
    g("s_branch L_aux")

    g("L_G_aux:")
    g("v_mov_b32 v254, 0")
    for k in range(5): g(f"v_dot2c_f32_bf16 v254, v{vW5+k}, v{vW5+k}")
    wave_sum(g, [254], 18)
    g(f"v_sqrt_f32 v254, v254\nv_mul_f32 v254, {opt.get('band', '0x3c800000')}, v254")
    g("L_aux:\ns_cmp_ge_u32 s70, 48\ns_cbranch_scc1 L_red")
    g.srd(20, 44, 640*3072); g.srd(24, 46, 640*3072); g.srd(8, 48, 1536*1280)
    g(f"v_lshrrev_b32 v14, 2, v{vL}\nv_mul_u32_u24 v14, 3072, v14\nv_and_b32 v15, 3, v{vL}\nv_lshl_add_u32 v4, v15, 4, v14\nv_lshlrev_b32 v5, 4, v{vL}")
    g("s_lshl_b32 s67, s70, 6\ns_and_b32 s69, s70, 1\ns_lshl_b32 s69, s69, 4\ns_or_b32 s69, s69, s5\ns_mul_i32 s62, s5, 5120\ns_mul_i32 s68, s70, 40960\ns_add_u32 s68, s68, s62")
    g("s_cmp_lt_u32 s5, 4\ns_cbranch_scc1 L_noyp\nv_mov_b32 v24, -1\nv_mov_b32 v25, -1\nv_mov_b32 v26, -1\nv_mov_b32 v27, -1")
    g(f"s_mul_i32 s58, s6, {40*3072}\ns_add_u32 s58, s58, s67\ns_add_u32 s58, s58, {OFF_Y}")
    if opt["ypw"]: g("s_waitcnt vmcnt(0)")
    for d in (16, 8, 0): g(f"buffer_store_dwordx4 v[24:27], v4, s[16:19], s58 offen sc1\ns_add_u32 s58, s58, {d*3072}")
    g(f"L_noyp:\nv_lshrrev_b32 v16, 5, v{vL}\nv_lshlrev_b32 v16, 5, v16\nv_xor_b32 v4, v4, v16")
    S_U, S_D = S[2] + 16, S[4] + 32
    if opt["fack"]: g("s_waitcnt vmcnt(0)")
    g("s_barrier\ns_setprio 0")
    for i in range(5):
        g(f"s_xor_b32 s59, s69, {8*i}" if i < 4 else "s_add_u32 s59, s5, 32")
        g(f"s_mul_i32 s58, s59, {16*3072}\ns_add_u32 s58, s58, s67\ns_lshl_b32 s59, s59, 10\ns_add_u32 m0, s59, {S[0]}\nbuffer_load_dwordx4 v4, s[20:23], s58 offen lds")
        g(f"s_add_u32 m0, s59, {S_U}\nbuffer_load_dwordx4 v4, s[24:27], s58 offen lds")
    for i in range(5):
        g(f"v_add_u32 v16, {64*i}, v{vL}\nv_mul_u32_u24 v17, 820, v16\nv_lshrrev_b32 v17, 16, v17\nv_lshlrev_b32 v17, 2, v17\nv_xor_b32 v16, v16, v17\nv_lshlrev_b32 v16, 4, v16")
        g(f"s_add_u32 m0, s62, {S_D+1024*i}\nbuffer_load_dwordx4 v16, s[8:11], s68 offen lds")
    g("s_waitcnt vmcnt(0)\ns_barrier")
    g("s_cmp_ge_u32 s5, 4\ns_cbranch_scc1 L_ffn_end")
    GU, WD = 120, 200
    g(f"v_bfe_u32 v14, v{vL}, 2, 2\nv_lshl_add_u32 v16, v{vQ}, 3, v14\nv_lshlrev_b32 v6, 6, v16\nv_and_b32 v17, 1, v15\nv_mul_u32_u24 v17, {S_U}, v17\nv_lshrrev_b32 v18, 1, v15")
    g("v_lshlrev_b32 v18, 3, v18\nv_add3_u32 v6, v6, v17, v18")
    g(f"v_and_b32 v17, 1, v{vQ}\nv_lshlrev_b32 v17, 1, v17\nv_xor_b32 v17, s6, v17\nv_lshl_add_u32 v6, v17, 4, v6")
    g(f"v_mul_u32_u24 v16, 1280, v16\nv_lshl_add_u32 v16, v15, 4, v16\nv_xor_b32 v17, s6, v14\nv_lshl_add_u32 v16, v17, 6, v16\nv_add_u32 v7, {S_D}, v16")
    lg = Lgkm(g)
    for n in range(20): lg.op(tr2(GU + 4*n, 6, 2048*n, 2048*n + 256))
    for i in range(5):
        for m in range(2): lg.op(tr2(WD + 8*i + 4*m, 7, 256*i + 8*m, 256*i + 8*m + 5120))
    XSP = 1312
    g(f"v_and_b32 v14, 7, v{vL}\nv_mul_u32_u24 v15, {XSP}, v14\nv_lshl_add_u32 v15, v{vQ}, 4, v15\nv_add_u32 v8, {S[6]+64}, v15")
    g(f"v_lshrrev_b32 v15, 5, v{vL}\nv_lshlrev_b32 v15, 3, v15\nv_lshl_add_u32 v15, v14, 4, v15\ns_lshl_b32 s58, s6, 7\ns_add_u32 s58, s58, {M_VX}\nv_add_u32 v9, s58, v15")
    g(f"v_lshlrev_b32 v15, 7, v{vQ}\nv_lshl_add_u32 v15, v14, 4, v15\nv_add_u32 v10, {M_VX}, v15")
    g(f"v_bfe_u32 v15, v{vL}, 2, 1\nv_lshl_add_u32 v15, v{vQ}, 1, v15\nv_mul_u32_u24 v15, 3072, v15\nv_and_b32 v16, 3, v{vL}\nv_lshl_add_u32 v11, v16, 4, v15")
    g(f"s_mul_i32 s58, s6, {8*3072}\ns_add_u32 s67, s67, s58\ns_add_u32 s67, s67, {OFF_Y}")
    for i in range(5): g(f"s_add_u32 s{40+i}, s67, {32*3072*i}")
    if opt["t3"]: g(f"v_cmp_gt_u32 vcc, 8, v{vJ}\nv_mov_b32 v15, 0x7ff00000\nv_cndmask_b32 v11, v15, v11, vcc")
    g("s_mov_b32 s72, 0x00ff00ff\ns_mov_b32 s73, 0x00ff00ff\ns_mov_b32 s74, 0xff\ns_mov_b32 s75, 0xff")
    g(f"s_mul_i32 s58, s6, {2*XSP}\ns_add_u32 s58, s58, {S[6]+64}\nv_add_u32 v20, s58, v5\nv_mul_u32_u24 v15, {XSP}, v{vQ}\nv_lshl_add_u32 v21, v{vJ}, 4, v15\nv_add_u32 v21, s58, v21")
    g(f"s_lshl_b32 s60, s6, 1\ns_add_u32 s61, s60, 1\nv_cmp_eq_u32 s[62:63], 0, v{vQ}\nv_lshlrev_b32 v22, 4, v{vJ}\nv_mov_b32 v23, {OFF_CN}\ns_movk_i32 s71, 1280")
    g(f"s_lshl_b32 s56, s70, 7\ns_add_u32 s56, s56, {OFF_HY+12}\ns_cmp_eq_u32 s6, 0\ns_cselect_b32 s56, s56, 0x7ff00000\nv_mov_b32 v18, s28")
    g("s_waitcnt lgkmcnt(0)")
    g.stamp(9, "fw")
    if opt["one"]: g("s_cmp_eq_u32 s6, 0\ns_cbranch_scc1 L_k1\ns_barrier\nL_k1:")
    key_wait(g)
    if opt["one"]: g("s_cmp_lg_u32 s6, 0\ns_cbranch_scc1 L_k2\ns_barrier\nL_k2:")
    Lm, x = key_merge(g)
    g.stamp(11, "ks")
    g(f"v_not_b32 v15, v{x}\nv_bfe_u32 v15, v15, 9, 5\nv_and_b32 v16, 7, v{x}\nv_lshl_add_u32 v15, v15, 3, v16\nv_mad_u32_u24 v15, v15, s71, v23")
    g("v_readlane_b32 s68, v15, s60\nv_readlane_b32 s69, v15, s61\nv_add_u32 v16, s69, v22\nv_add_u32 v17, s68, v22\nv_cndmask_b32 v16, v16, v17, s[62:63]")
    ld = ["buffer_load_dwordx4 v[108:111], v5, s[16:19], s68 offen sc1", "buffer_load_dwordx4 v[112:115], v5, s[16:19], s69 offen sc1", "buffer_load_dwordx4 v[116:119], v16, s[16:19], 0 offen offset:1024 sc1"]
    for l in ld: g(l)
    RL = opt["rlate"]
    if RL: g("s_mov_b64 exec, 1\nbuffer_store_dword v18, v5, s[16:19], s56 offen sc1\ns_mov_b64 exec, -1")
    key_refine(g, Lm, x)
    gather(g, ld, lambda n: g(f"v_cmp_eq_u32 vcc, -1, v{111+4*n}"), NOP, lambda: g("v_max3_u32 v17, v111, v115, v119\nv_cmp_eq_u32 vcc, -1, v17"), waits=[1 if RL else 0, None, None])
    g.retries("rrow")
    g(f"ds_write_b128 v20, v[108:111]\nds_write_b128 v20, v[112:115] offset:{XSP}\ns_mov_b32 exec_hi, 0\nds_write_b128 v21, v[116:119] offset:1024")
    if not RL: g("s_mov_b64 exec, 1\nbuffer_store_dword v18, v5, s[16:19], s56 offen sc1")
    g("s_mov_b64 exec, -1\ns_waitcnt lgkmcnt(0)")
    g.stamp(12, "rows")
    g("s_barrier")
    lg = Lgkm(g); xi = {}
    def xrd(n): xi[n] = lg.op(f"ds_read_b128 v[{24+4*n}:{27+4*n}], v8 offset:{64*n}")
    for n in range(8): xrd(n)
    for n in range(20):
        if n % 2 == 0: lg.wait(xi[n + 1])
        g(mfma16(104, GU + 4*n, 24 + 4*n, n == 0))
        if n + 8 < 20: xrd(n + 8)
    for q in range(4): g(f"v_mul_f32 v{112+q}, s64, v{104+q}")
    for q in range(4): g(f"v_exp_f32_e64 v{112+q}, -v{112+q}")
    for q in range(4): g(f"v_permlane16_swap_b32 v{104+q}, v{108+q}")
    for q in range(4): g(f"v_add_f32 v{112+q}, 1.0, v{112+q}")
    for q in range(4): g(f"v_rcp_f32 v{112+q}, v{112+q}")
    for q in (0, 2): g(f"v_pk_mul_f32 v[{104+q}:{105+q}], v[{104+q}:{105+q}], v[{108+q}:{109+q}]")
    for q in (0, 2): g(f"v_pk_mul_f32 v[{104+q}:{105+q}], v[{104+q}:{105+q}], v[{112+q}:{113+q}]")
    g(cvt(108, 104) + "\n" + cvt(109, 106) + "\ns_mov_b64 exec, s[74:75]\nds_write_b64 v9, v[108:109]\ns_mov_b64 exec, -1")
    g("s_waitcnt lgkmcnt(0)\ns_barrier\nds_read_b128 v[100:103], v10\ns_waitcnt lgkmcnt(0)")
    def yput(i):
        for q in range(4): g(cvt(64+4*i+q, 24+8*i+2*q))
        g(f"buffer_store_dwordx4 v[{64+4*i}:{67+4*i}], v11, s[16:19], s{40+i} offen sc1")
    if opt["t3"]:
        for i in range(10):
            g(mfma16(24 + 4*i, WD + 4*i, 100, True))
            if i in (7, 9): yput((i - 7) // 2)
        for i in range(2, 5): yput(i)
    else:
        for i in range(10): g(mfma16(24 + 4*i, WD + 4*i, 100, True))
        g("s_mov_b64 exec, s[72:73]")
        for i in range(5): yput(i)
    g("L_ffn_end:\ns_mov_b64 exec, -1")
    g.stamp(13, "yp")
    g.end()
    g.flush_slow()

    g("L_red:\ns_cmp_ge_u32 s5, 4\ns_cbranch_scc1 L_red_end")
    g("s_sub_u32 s56, s1, 6\ns_lshl2_add_u32 s56, s56, s6\ns_and_b32 s57, s2, 7")
    g.srd(20, 44, 640*3072); g.srd(24, 46, 640*3072); g.srd(8, 48, 1536*1280)
    g(f"v_mul_u32_u24 v14, 21846, v{vL}\nv_lshrrev_b32 v14, 16, v14\nv_mul_u32_u24 v15, {3072-384}, v14\nv_lshlrev_b32 v14, 7, v{vL}\nv_add_u32 v15, v15, v14")
    g(f"s_mul_i32 s58, s56, {7*3072}\ns_mul_i32 s59, s57, 384\ns_add_u32 s58, s58, s59\ns_add_u32 s58, s58, {472*3072}\ns_mov_b64 exec, 0x1fffff")
    g("buffer_load_dword v230, v15, s[20:23], s58 offen\nbuffer_load_dword v231, v15, s[24:27], s58 offen\ns_mov_b64 exec, -1")
    g("s_mul_i32 s58, s56, 10240\ns_mul_i32 s59, s57, 245760\ns_add_u32 s58, s58, s59\nbuffer_load_dword v232, v14, s[8:11], s58 offen")
    g("s_add_u32 s58, s58, 8192\ns_mov_b64 exec, 0xffff\nbuffer_load_dword v233, v14, s[8:11], s58 offen\ns_mov_b64 exec, -1")
    g("s_cmp_ge_u32 s70, 88\ns_cbranch_scc1 L_red_end\ns_sub_u32 s70, s70, 48")
    g.srd(24, 50, 2048*1280)
    g(f"v_and_b32 v14, 1, v{vL}\nv_lshlrev_b32 v14, 4, v14\nv_mov_b32 v15, 0x3f80\nv_lshlrev_b32 v15, v14, v15\nv_bfe_u32 v14, v{vL}, 1, 2")
    for q in range(4): g(f"v_cmp_eq_u32 vcc, {q}, v14\nv_cndmask_b32 v{20+q}, 0, v15, vcc")
    g(f"v_and_b32 v16, 1, v{vQ}\nv_lshlrev_b32 v4, 3, v16\nv_lshlrev_b32 v5, 4, v{vL}\nv_lshlrev_b32 v8, 7, v{vL}")
    g(f"s_lshr_b32 s58, s6, 1\ns_lshl1_add_u32 s67, s70, s58\ns_lshl_b32 s67, s67, 4\ns_add_u32 s68, s67, {OFF_CN}\ns_add_u32 s69, s67, {OFF_CH}")
    g(f"s_lshl2_add_u32 s72, s70, s6\ns_mul_i32 s72, s72, 3072\ns_add_u32 s72, s72, {OFF_Y}\ns_mov_b32 s73, {OFF_HY+12}")
    g("s_and_b32 s58, s6, 1\ns_lshl_b32 s58, s58, 2\ns_lshl_b32 s36, 0x000f000f, s58\ns_mov_b32 s37, 0\ns_mov_b32 s38, -1\ns_mov_b32 s39, 0xffff")
    def hwait():
        ld = ["buffer_load_dword v17, v8, s[16:19], s73 offen sc1"]
        g("s_mov_b64 exec, s[38:39]"); g(ld[0])
        gather(g, ld, NOP, NOP, lambda: g("v_cmp_ne_u32 vcc, s28, v17"), full="s[38:39]", tight=opt["tight"] & 4)
        g("s_mov_b64 exec, -1")
    if RL: hwait()
    key_wait(g)
    Lm, x = key_merge(g)
    key_refine(g, Lm, x)
    g.stamp(11)
    g(f"v_not_b32 v15, v{x}\nv_bfe_u32 v15, v15, 3, 11\nv_mul_u32_u24 v6, 1280, v15\nv_add_u32 v6, v6, v4")
    g(f"v_lshrrev_b32 v15, 6, v15\nv_and_b32 v16, 7, v{x}\nv_lshl_add_u32 v15, v15, 3, v16\nv_mul_u32_u24 v15, 1280, v15\nv_add_u32 v7, v15, v4")
    from_key(g, 15, x, 16)
    g.rnd(15, 15)
    g("v_mul_f32 v15, s64, v15\nv_exp_f32_e64 v15, -v15\nv_add_f32 v15, 1.0, v15\nv_rcp_f32 v15, v15")
    g.rnd(10, 15)
    ld = ["buffer_load_dwordx2 v[80:81], v7, s[16:19], s68 offen sc1\nbuffer_load_dwordx2 v[82:83], v7, s[16:19], s69 offen sc1"]
    g("s_mov_b64 exec, s[36:37]"); g(ld[0])
    gather(g, ld, NOP, NOP, lambda: g("v_max_u32 v17, v81, v83\nv_cmp_eq_u32 vcc, -1, v17"), full="s[36:37]")
    for q in range(2):
        g(f"v_lshlrev_b32 v{86+2*q}, 16, v{80+q}\nv_and_b32 v{87+2*q}, s31, v{80+q}\nv_lshlrev_b32 v{90+2*q}, 16, v{82+q}\nv_and_b32 v{91+2*q}, s31, v{82+q}")
    g.stamp(12)
    if RL: g("s_mov_b64 exec, -1")
    else: hwait()
    ld = [f"buffer_load_dwordx4 v[{24+4*n}:{27+4*n}], v5, s[16:19], s72 offen offset:{1024*n} sc1" for n in range(3)]
    for l in ld: g(l)
    gather(g, ld, lambda n: g(f"v_cmp_eq_u32 vcc, -1, v{27+4*n}"), lambda n: g(mfma16(72, 20, 24 + 4*n, n == 0)), lambda: g("v_max3_u32 v17, v27, v31, v35\nv_cmp_eq_u32 vcc, -1, v17"), tight=opt["tight"] & 8)
    g.retries("rY")
    for sh in (4, 8):
        for q in range(4): g(f"v_add_f32_dpp v{72+q}, v{72+q}, v{72+q} row_ror:{sh} {DPPM}")
    for q in (0, 2): g(f"v_pk_fma_f32 v[{72+q}:{73+q}], v[{72+q}:{73+q}], v[10:11], v[{86+q}:{87+q}] op_sel_hi:[1,0,1]")
    for q in range(4): g.rnd(72+q, 72+q)
    for q in (0, 2): g(f"v_pk_add_f32 v[{72+q}:{73+q}], v[{72+q}:{73+q}], v[{90+q}:{91+q}]")
    g(cvt(76, 72) + "\n" + cvt(77, 74) + "\ns_mov_b64 exec, s[36:37]\nbuffer_store_dwordx2 v[76:77], v6, s[24:27], s67 offen sc1")
    g("s_or_b32 s70, s70, s6\ns_cbranch_scc1 L_red_end\ns_mov_b64 exec, 1\nv_mov_b32 v17, s28\nbuffer_store_dword v17, v5, s[16:19], 0 offen offset:12 sc1")
    g("L_red_end:\ns_mov_b64 exec, -1")
    g.stamp(13)
    g.end()
    g.flush_slow()

    if opt.get("stamps"):
        g("L_stamps:\ns_waitcnt vmcnt(0)\ns_memrealtime s[98:99]\ns_memtime s[92:93]\ns_waitcnt lgkmcnt(0)\ns_sub_u32 s92, s92, s94\ns_getreg_b32 s93, hwreg(HW_REG_HW_ID)\ns_mov_b32 s91, s98\ns_mov_b32 s76, s96")
        g(f"s_add_u32 s54, s54, {OFF_STAMP}\ns_addc_u32 s55, s55, 0")
        g.srd(16, 54, 1 << 20)
        g("s_lshl_b32 s58, s2, 3\ns_add_u32 s58, s58, s5\ns_lshl_b32 s58, s58, 7\nv_mov_b32 v4, 0\ns_mov_b64 exec, 1")
        if opt.get("lite"):
            for i in range(7): g(f"s_sub_u32 s59, s{78+2*i}, s94\nv_mov_b32 v5, s59\nbuffer_store_dword v5, v4, s[16:19], s58 offen offset:{4*i}")
            g("v_mov_b32 v5, s0\nbuffer_store_dword v5, v4, s[16:19], s58 offen offset:28\ns_endpgm")
        else:
            for i in range(16): g(f"v_mov_b32 v5, s{76+i}\nbuffer_store_dword v5, v4, s[16:19], s58 offen offset:{4*i}")
            for i, r in enumerate((1, 0, 92, 93)): g(f"v_mov_b32 v5, s{r}\nbuffer_store_dword v5, v4, s[16:19], s58 offen offset:{64+4*i}")
            g(f"v_writelane_b32 v{STV}, s92, 15\ns_mov_b64 exec, 0xffff\nv_lshlrev_b32 v4, 2, v{vL}\ns_add_u32 s58, s58, {1<<19}\nbuffer_store_dword v{STV}, v4, s[16:19], s58 offen\ns_endpgm")
    g("L_codeend:")
    lines, nn = hazard.fix(g.lines, verbose=opt.get("verbose"))
    lines, npro, npad = align.fix(lines, KN)
    hdr = "" if opt.get("nohdr") else open("cdna_kernels/" + NAME + ".s.ref").read().split("; Override launch")[0]
    return wrap("\n".join(lines), 256, 512, 163840, vgpr=256, accum=256, sgpr=102, header=hdr), (nn, npro, npad)

DEFAULT = dict(late=2, gap=13, oahead=(1, 1), tm=5, l0=1, sm=0, t3=0, ypw=0, fack=0, rlate=0, one=0, tight=0)
STR_OPTS = ("band",)
def parse(kvs):
    opt = dict(DEFAULT)
    for kv in kvs:
        if "=" in kv:
            k, v = kv.split("="); opt[k] = v if k in STR_OPTS else eval(v)
    return opt
if __name__ == "__main__":
    txt, nn = build(parse(sys.argv[2:]))
    open(sys.argv[1], "w").write(txt)
    print("nops/promoted/padded:", nn, "lines:", txt.count("\n"))
```

```python
import subprocess, re, tempfile, os
PROMO = ("v_mov_b32", "v_add_f32", "v_sub_f32", "v_mul_f32", "v_max_f32", "v_min_f32", "v_max_u32", "v_min_u32", "v_and_b32", "v_or_b32", "v_xor_b32",
         "v_lshlrev_b32", "v_lshrrev_b32", "v_ashrrev_i32", "v_add_u32", "v_sub_u32", "v_subrev_u32", "v_exp_f32", "v_rcp_f32", "v_sqrt_f32",
         "v_cndmask_b32", "v_not_b32", "v_mul_u32_u24", "v_dot2c_f32_bf16", "v_cmp_eq_u32", "v_cmp_ne_u32", "v_cmp_lt_u32", "v_cmp_le_u32", "v_cmp_gt_u32")
def sizes(lines, pre):
    src = '.amdgcn_target "amdgcn-amd-amdhsa--gfx950"\n.text\n' + pre + ":\n" + "\n".join(lines) + "\n"
    r = subprocess.run(["llvm-mc", "-triple=amdgcn-amd-amdhsa", "-mcpu=gfx950", "-show-encoding"], input=src, capture_output=True, text=True)
    assert r.returncode == 0, r.stderr[:2000]
    enc = [len(m.group(1).split(",")) for m in re.finditer(r"; encoding: \[([^\]]*)\]", r.stdout)]
    out = []; k = 0
    for l in lines:
        t = l.strip()
        if not t or t.endswith(":") or t.startswith((".", ";")): out.append(0)
        else: out.append(enc[k]); k += 1
    assert k == len(enc)
    return out
def fix(lines, pre, minrun=6):
    sz = sizes(lines, pre)
    out = []; osz = []; off = 0; npro = npad = 0
    isv = lambda l: l.strip().startswith("v_") and not l.strip().startswith("v_mfma")
    pages = []
    for i, l in enumerate(lines):
        if l.strip().startswith(".p2align"): pages.append(off); off = 0
        if sz[i] == 8 and off % 8 == 4 and isv(l):
            run = 0
            for j in range(i, len(lines)):
                if sz[j] == 4: break
                if sz[j] == 8 and isv(lines[j]): run += 1
            done = False
            for j in range(len(out) - 1, -1, -1):
                if out[j].strip().startswith(".p2align"): break
                if osz[j] == 0: continue
                if osz[j] == 8:
                    if isv(out[j]): break
                    continue
                mn = out[j].split()[0]
                if mn in PROMO:
                    out[j] = out[j].replace(mn, mn + "_e64", 1); osz[j] = 8; off += 4; npro += 1; done = True
                    break
                if len(out) - j > 12: break
            if not done and run >= minrun:
                out.append("    s_nop 0"); osz.append(4); off += 4; npad += 1
        out.append(l); osz.append(sz[i]); off += sz[i]
    return out, npro, (npad, pages + [off])
```

```python
import sys
from asmlib import Asm, NAME, KN, wrap
import hazard, align

OHD = 3072
OBLK = 4*OHD
OFF_P   = 0x10000
OFF_F   = OFF_P + 32*4*32*768
OFF_O   = OFF_F + 32*4*768
OFF_ST  = OFF_O + 32*8*OBLK
OFF_KEY = OFF_ST + 32*5*1024
OFF_CN  = OFF_KEY + 4096
OFF_CH  = OFF_CN + 256*1280
OFF_Y   = OFF_CH + 256*1280
OFF_HY  = OFF_Y + 160*48*64
OFF_HS  = OFF_HY + 48*128
OFF_HK  = OFF_HS + 256*128
WS_END  = OFF_HK + 32*128
OFF_STAMP = 16 << 20
SLOT = 20480
S = [i*SLOT for i in range(7)]
M_VX = 7*SLOT
M_WP = M_VX + 12288
M_SM = M_WP + 4096
L_FL  = M_SM
F_LAND, F_REL, F_PK, F_XR, F_ER, F_KR, F_PQ, F_WOR, F_WL, F_VS, F_OS = 0, 16, 31, 33, 34, 35, 36, 37, 38, 39, 40
L_MR  = M_SM + 1024
L_TOP = M_SM + 2048
L_SP  = M_VX
CH_SLOT = [0, 1, 2, 3, 4, 5, 6, 0, 1, 2, 4, 5, 6, 0, 1]
CH_TOFF = [1280]*5 + [2560]*5 + [0]*5
WSL = [2, 3, 4, 5, 0, 0, 1, 6]
S_PK, S_PQ, S_O, S_O2, S_HT = S[3], S[6], S[2], S[4], S[4]
LOG2E = 0x3fb8aa3b
SPIN = 1 << 16
STV = 0
DPPM = "row_mask:0xf bank_mask:0xf"

vL, vJ, vQ = 1, 2, 3
vWD = 4
vWR = 9
vFT, vF4 = 12, 13
XF, WB, AC, AC2 = 24, 104, 136, 168
PB, PP = 156, 168
EP, EN = 104, 124
vSC = 248
vW5 = 240

class G(Asm):
    def __init__(s, opt):
        super().__init__(); s.o = opt; s.slow = []; s.items = None
    def __call__(s, text=""):
        if not s.items: return super().__call__(text)
        for l in text.split("\n"):
            super().__call__(l)
            if s.items and l.strip().startswith("v_"):
                s.acc += 2 if l.strip().startswith(("v_exp", "v_mfma")) else 1
                if s.acc >= s.gap:
                    it = s.items; s.items = None; s.acc = 0
                    w = it.pop(0)()
                    while it and w == 0: w = it.pop(0)()
                    s.items = it
    def interleave(s, items, gap): s.items = items; s.gap = gap; s.acc = 0
    def drain(s):
        it = s.items or []; s.items = None
        for f in it: f()
    def page(s, jump=True, fill=None):
        L = s.lab("pg")
        if jump: s(f"s_branch {L}")
        if fill: fill()
        if s.o["pages"]: s(".p2align 12")
        s(f"{L}:")
    def srd(s, d, b, n):
        s(f"s_mov_b32 s{d}, s{b}\ns_and_b32 s{d+1}, s{b+1}, 0xffff\ns_mov_b32 s{d+2}, {n}\ns_mov_b32 s{d+3}, 0x20000")
    def lite(s, name):
        if s.o.get("marks"): s(f"M_{name}_{len(s.lines)}:")
        L = s.o.get("lite") or []
        if name in L: i = L.index(name); s(f"s_memtime s[{78+2*i}:{79+2*i}]")
    def retries(s, name):
        L = s.o.get("lite") or []
        if name in L: i = L.index(name); s(f"s_sub_u32 s{78+2*i}, {SPIN}, s57\ns_mul_i32 s{78+2*i}, s{78+2*i}, 100\ns_add_u32 s{78+2*i}, s{78+2*i}, s94")
    def stamp(s, n, name=None):
        if name: s.lite(name)
        if s.o.get("stamps") == 1 and not s.o.get("lite"):
            s(f"s_memrealtime s[98:99]\ns_memtime s[100:101]\ns_waitcnt lgkmcnt(0)\ns_mov_b32 s{76+n}, s98\ns_sub_u32 s100, s100, s94\nv_writelane_b32 v{STV}, s100, {n}")
    def end(s):
        s("s_branch L_stamps" if s.o.get("stamps") else "s_endpgm")
    def rnd(s, d, x):
        s(f"v_cvt_pk_bf16_f32 v{d}, 0, v{x}")
    def ln_scalars(s, sm, sq, nm, rs, t):
        s(f"v_mul_f32 v{sm}, 0xbacccccd, v{sm}\nv_mul_f32 v{sq}, 0x3acccccd, v{sq}")
        s(f"v_fma_f32 v{t}, -v{sm}, v{sm}, v{sq}\nv_max_f32 v{t}, 0, v{t}")
        s.rnd(t, t)
        s(f"v_add_f32 v{t}, 0x3727c5ac, v{t}")
        s.rnd(t, t)
        s(f"v_sqrt_f32 v{t}, v{t}")
        s.rnd(nm, sm); s.rnd(t, t)
        s(f"v_rcp_f32 v{rs}, v{t}")
    def fset_t(s, n): return f"ds_write_b32 v{vFT}, v{vFT} offset:{16*n}"
    def fget_t(s, n, vT): return f"ds_read_b32 v{vT}, v{vF4} offset:{16*n}"
    def fset(s, n): s(s.fset_t(n))
    def fwait(s, n, vT, own=False):
        L = s.lab("fw"); E = s.lab("fwe")
        s(f"s_mov_b32 s57, {SPIN*8}\n{L}:\nds_read_b32 v{vT}, v{vFT if own else vF4} offset:{16*n}\ns_waitcnt lgkmcnt(0)\nv_cmp_eq_u32 vcc, 0, v{vT}")
        s(f"s_cbranch_vccz {E}\ns_sub_u32 s57, s57, 1\ns_cbranch_scc0 {L}\n{E}:")
    def fcmp(s, vT): s(f"v_cmp_eq_u32 vcc, 0, v{vT}")
    def fcheck(s, n, vT, cmp=True):
        L = s.lab("fs"); R = s.lab("fr")
        if cmp: s.fcmp(vT)
        s(f"s_cbranch_vccnz {L}\n{R}:")
        s.slow.append(lambda: (s(f"{L}:"), s.fwait(n, vT), s(f"s_branch {R}")))
    def flush_slow(s):
        sl = s.slow; s.slow = []
        for f in sl: f()

class Vm:
    def __init__(s, g, n=0): s.g = g; s.n = n; s.done = 0
    def op(s, text):
        s.g(text); s.n += text.count("buffer_")
        return s.n
    def wait(s, idx, extra=""):
        assert 0 <= s.n - idx < 64
        if idx > s.done or idx == 0: s.g(f"s_waitcnt vmcnt({s.n - idx}){extra}")
        s.done = max(s.done, idx)

class Lgkm:
    def __init__(s, g): s.g = g; s.n = 0; s.done = 0
    def op(s, text):
        k = text.count("ds_")
        if s.n + k - s.done > 15: s.wait(s.n + k - 15)
        s.g(text); s.n += k
        return s.n
    def wait(s, idx):
        if idx > s.done: s.g(f"s_waitcnt lgkmcnt({s.n - idx})"); s.done = idx

def tr2(r, va, o0, o1):
    return f"ds_read_b64_tr_b16 v[{r}:{r+1}], v{va} offset:{o0}\nds_read_b64_tr_b16 v[{r+2}:{r+3}], v{va} offset:{o1}"
def mfma16(d, a, b, first): return f"v_mfma_f32_16x16x32_bf16 v[{d}:{d+3}], v[{a}:{a+3}], v[{b}:{b+3}], " + ("0" if first else f"v[{d}:{d+3}]")
def mfma32(d, a, b, first): return f"v_mfma_f32_32x32x16_bf16 v[{d}:{d+15}], v[{a}:{a+3}], v[{b}:{b+3}], " + ("0" if first else f"v[{d}:{d+15}]")
def cvt(d, a): return f"v_cvt_pk_bf16_f32 v{d}, v{a}, v{a+1}"

def w_dma_addr(g):
    for i in range(5):
        g(f"v_add_u32 v14, {64*i}, v{vL}\nv_mul_u32_u24 v15, 6554, v14\nv_lshrrev_b32 v15, 16, v15")
        g(f"v_mul_u32_u24 v16, 10, v15\nv_sub_u32 v14, v14, v16")
        g("v_and_b32 v16, 0x13, v15\nv_and_b32 v17, 4, v15\nv_lshl_or_b32 v16, v17, 1, v16\nv_bfe_u32 v17, v15, 3, 1\nv_lshl_or_b32 v16, v17, 2, v16")
        g(f"v_mul_u32_u24 v16, 3840, v16\nv_lshl_add_u32 v{vWD+i}, v14, 4, v16")
        if 0 < i < 4: g(f"v_subrev_u32 v{vWD+i}, {1024*i}, v{vWD+i}")
def w_tr_addr(g):
    g(f"v_lshrrev_b32 v14, 5, v{vL}\nv_lshlrev_b32 v14, 4, v14\nv_bfe_u32 v15, v{vL}, 2, 3\nv_add_u32 v14, v14, v15")
    g(f"v_mul_u32_u24 v14, 160, v14\nv_and_b32 v15, 3, v{vL}\nv_mad_u32_u24 v{vWR}, v15, 40, v14")
    g(f"v_add_u32 v{vWR+1}, {3*SLOT}, v{vWR}\nv_add_u32 v{vWR+2}, {6*SLOT}, v{vWR}")
SK = [40, 41, 32, 33, 75]
def chunk_offsets(g):
    g("s_lshl_b32 s60, s7, 1\ns_add_u32 s60, s60, s6\ns_mul_i32 s61, s4, 160")
    for c in range(5):
        g(f"s_add_u32 s58, s60, {4*c}\ns_cmp_ge_u32 s58, 20\ns_cselect_b32 s59, 20, 0\ns_sub_u32 s58, s58, s59\ns_mul_i32 s58, s58, {32*3840}\ns_add_u32 s{SK[c]}, s58, s61")
def chunk_dma(c):
    so = f"s{SK[c%5]}"; pre = ""
    if CH_TOFF[c]: pre = f"s_add_u32 s67, {so}, {CH_TOFF[c]}\n"; so = "s67"
    pre = f"s_add_u32 m0, s62, {S[CH_SLOT[c]]}\n" + pre
    out = [(pre if i == 0 else "") + f"buffer_load_dwordx4 v{vWD+i}, s[12:15], {so} offen offset:{1024*i} lds" for i in range(4)]
    return out + [f"s_add_u32 m0, s62, {S[CH_SLOT[c]]+4096}\nbuffer_load_dwordx4 v{vWD+4}, s[12:15], {so} offen lds"]

def gemm(g, c0, nch, land, rel, ev=None, pre=None, D=6, NB=8, W=4, vC=14, n0=0):
    ev = ev or {}
    land = {i: c0 + i for i in land}
    lg = Lgkm(g); lg.n = n0; idx = {}; pend = {}; N = 20 * nch
    def rd(f):
        n, T = divmod(f, 5)
        if f % 20 == 0 and n // 4 in land:
            g.fcheck(F_LAND + land[n // 4], vC, False)
        b, off = divmod(S[CH_SLOT[c0 + n // 4]] + (n % 4) * 5120 + 8 * T, 3 * SLOT)
        idx[f] = lg.op(tr2(WB + 4 * (f % NB), vWR + b, off, off + 1280))
    for f in range(D): rd(f)
    if pre: pre(lg)
    for f in range(N):
        if f + D < N: rd(f + D)
        if f % W == 0: lg.wait(idx[f + W - 1])
        if f % 20 == 12 and f // 20 + 1 in land:
            assert pend[f // 20 + 1] <= lg.done
            g.fcmp(vC)
        n, T = divmod(f % 100, 5)
        g(mfma16((AC, AC2)[f // 100] + 4 * T, WB + 4 * (f % NB), XF + 4 * n, n == 0))
        if f % 20 == 8 and f // 20 + 1 in land: pend[f // 20 + 1] = lg.op(g.fget_t(F_LAND + land[f // 20 + 1], vC))
        if f % 20 == 16 and f // 20 in rel: lg.op(g.fset_t(F_REL + c0 + f // 20))
        if f in ev: ev[f](lg)
        g.lite(f"g{20*c0 + f}")

def phi_waddr(g, va):
    g(f"v_bfe_u32 v14, v{vL}, 2, 2\nv_mul_u32_u24 v14, 40, v14\nv_mul_u32_u24 v15, 800, v{vQ}\nv_add_u32 v14, v14, v15\nv_and_b32 v15, 3, v{vL}")
    g(f"v_cmp_eq_u32 vcc, v15, v{vQ}\nv_mov_b32 v15, 3200\nv_cndmask_b32 v14, v15, v14, vcc\nv_add_u32 v{va}, {M_WP}, v14")
def phi_wload(g, PW, va):
    g(f"v_mov_b32 v{PW+50}, 0\nv_mov_b32 v{PW+51}, 0\nv_mov_b32 v{PB+10}, 0\nv_mov_b32 v{PB+11}, 0")
    for T in range(5):
        for i in range(5): g(f"ds_read_b64_tr_b16 v[{PW+10*T+2*i}:{PW+10*T+2*i+1}], v{va} offset:{160*i + 8*T}")
        if T % 2 == 1: g("s_waitcnt lgkmcnt(5)")
def phi(g, PW, pk, mid=None):
    todo = []
    for T in range(5):
        r = PW + 10*T; d = PP + 4*T
        for st in range(3):
            g(mfma16(d, r + 4*st, PB + 4*st, st == 0))
            if T >= 3:
                for _ in range(2): x = todo.pop(0); g.rnd(x, x)
        todo += list(range(d, d + 4))
    def mm(i, first=False):
        if first: g(f"v_max3_f32 v14, v{PP}, v{PP+1}, v{PP+2}\nv_min3_f32 v15, v{PP}, v{PP+1}, v{PP+2}")
        else: g(f"v_max3_f32 v14, v14, v{PP+i}, v{PP+i+1}\nv_min3_f32 v15, v15, v{PP+i}, v{PP+i+1}")
    mm(0, True)
    for i in (3, 5, 7, 9): mm(i)
    for x in todo: g.rnd(x, x)
    for i in (11, 13, 15, 17): mm(i)
    g(f"v_max_f32 v14, v14, v{PP+19}\nv_min_f32 v15, v15, v{PP+19}\nv_mul_f32 v14, s64, v14\nv_mul_f32 v16, s64, v15")
    g.lite("q2" if pk else "k2")
    def args(E, c, neg):
        if pk:
            for i in range(0, 20, 2): g(f"v_pk_fma_f32 v[{E+i}:{E+i+1}], v[{PP+i}:{PP+i+1}], s[64:65], v[{c}:{c+1}] op_sel_hi:[1,0,0] neg_lo:{neg} neg_hi:{neg}")
        else:
            for i in range(20): g(f"v_fma_f32 v{E+i}, v{PP+i}, s64, -v{c}" if E == EP else f"v_fma_f32 v{E+i}, -v{PP+i}, s64, v{c}")
    def finish(E, c):
        for i in range(20): g(f"v_exp_f32 v{E+i}, v{E+i}")
        if pk:
            g(f"v_pk_add_f32 v[{c}:{c+1}], v[{E}:{E+1}], v[{E+2}:{E+3}]")
            for i in range(4, 20, 2): g(f"v_pk_add_f32 v[{c}:{c+1}], v[{c}:{c+1}], v[{E+i}:{E+i+1}]")
            g(f"v_add_f32 v{c}, v{c}, v{c+1}")
        else:
            g(f"v_add_f32 v{c}, v{E}, v{E+1}")
            for i in range(2, 20): g(f"v_add_f32 v{c}, v{c}, v{E+i}")
        g(f"v_rcp_f32 v{c}, v{c}")
        if pk:
            for i in range(0, 20, 2): g(f"v_pk_mul_f32 v[{E+i}:{E+i+1}], v[{E+i}:{E+i+1}], v[{c}:{c+1}] op_sel_hi:[1,0]")
        else:
            for i in range(20): g(f"v_mul_f32 v{E+i}, v{c}, v{E+i}")
    args(EP, 14, "[0,0,1]"); args(EN, 16, "[1,0,0]")
    finish(EP, 14)
    if mid: mid()
    finish(EN, 16)

def sort_consts(g):
    for k in range(3): g(f"v_bfe_u32 v{vSC+k}, v{vL}, {k}, 1\nv_add_u32 v{vSC+k}, -1, v{vSC+k}")
def ce(g, xs, ts, perm, k):
    for x, t in zip(xs, ts): g(f"v_mov_b32_dpp v{t}, v{x} {perm} {DPPM}")
    for x, t in zip(xs, ts): g(f"v_med3_u32 v{x}, v{x}, v{t}, v{vSC+k}")
def resort(g, xs, ts, same=False):
    if same: ce(g, xs, ts, "row_ror:4", 2)
    else:
        for x, t in zip(xs, ts): g(f"v_max_u32_dpp v{t}, v{x}, v{x} row_shl:4 row_mask:0xf bank_mask:0x5")
        for x, t in zip(xs, ts): g(f"v_min_u32_dpp v{t}, v{x}, v{x} row_shr:4 row_mask:0xf bank_mask:0xa")
        xs, ts = ts, xs
    ce(g, xs, ts, "quad_perm:[2,3,0,1]", 1); ce(g, xs, ts, "quad_perm:[1,0,3,2]", 0)
    return xs, ts
def sort8(g, xs, ts):
    ce(g, xs, ts, "quad_perm:[1,0,3,2]", 0)
    ce(g, xs, ts, "quad_perm:[3,2,1,0]", 1); ce(g, xs, ts, "quad_perm:[1,0,3,2]", 0)
    ce(g, xs, ts, "row_half_mirror", 2); ce(g, xs, ts, "quad_perm:[2,3,0,1]", 1); ce(g, xs, ts, "quad_perm:[1,0,3,2]", 0)
def merge_wave(g, x, t, final_sort):
    g(f"v_max_u32_dpp v{x}, v{x}, v{x} row_mirror {DPPM}")
    (x,), (t,) = resort(g, [x], [t])
    g(f"v_mov_b32 v{t}, v{x}\nv_permlane16_swap_b32 v{x}, v{t}\nv_max_u32_dpp v{x}, v{t}, v{x} row_half_mirror {DPPM}")
    (x,), (t,) = resort(g, [x], [t], True)
    g(f"v_mov_b32 v{t}, v{x}\nv_permlane32_swap_b32 v{x}, v{t}\nv_max_u32_dpp v{x}, v{t}, v{x} row_half_mirror {DPPM}")
    if final_sort: (x,), (t,) = resort(g, [x], [t], True)
    return x
def wave_sum(g, xs, t):
    for sh in (1, 2, 4, 8):
        for x in xs: g(f"v_add_f32_dpp v{x}, v{x}, v{x} row_ror:{sh} {DPPM}")
    for sw in (16, 32):
        for x in xs: g(f"v_mov_b32 v{t}, v{x}\nv_permlane{sw}_swap_b32 v{x}, v{t}\nv_add_f32 v{x}, v{x}, v{t}")
def to_key(g, x, t):
    g(f"v_ashrrev_i32 v{t}, 31, v{x}\nv_or_b32 v{t}, 0x80000000, v{t}\nv_xor_b32 v{x}, v{x}, v{t}")
def from_key(g, d, k, t):
    g(f"v_and_b32 v{d}, 0xffffc000, v{k}\nv_or_b32 v{d}, 0x2000, v{d}\nv_ashrrev_i32 v{t}, 31, v{d}\nv_not_b32 v{t}, v{t}\nv_or_b32 v{t}, 0x80000000, v{t}\nv_xor_b32 v{d}, v{d}, v{t}")

def spin(g, loads, consume, final):
    L = g.lab("sp")
    g(f"s_mov_b32 s57, {SPIN}\n{L}:")
    for l in loads: g(l)
    g(f"s_sub_u32 s57, s57, 1\ns_cselect_b64 s[10:11], 0, -1\ns_waitcnt vmcnt(0)")
    for n in range(len(loads)): consume(n)
    final()
    g(f"s_and_b64 vcc, vcc, s[10:11]\ns_cbranch_vccnz {L}")
    g.slow.append(lambda: None)

def gather(g, loads, bad, consume, final, waits=None, full="-1", tight=False):
    if tight:
        n = sum(len([x for x in l.split("\n") if x.strip()]) for l in loads)
        assert all(a.strip() == b.strip() for a, b in zip(g.lines[-n:], "\n".join(loads).split("\n")))
        del g.lines[-n:]
        return spin(g, loads, consume, final)
    N = len(loads)
    L = g.lab("ga"); R = g.lab("gr"); E = g.lab("gae")
    g(f"s_mov_b32 s57, {SPIN}\n{L}:")
    for n in range(N):
        w = (N - 1 - n) if waits is None else waits[n]
        if w is not None: g(f"s_waitcnt vmcnt({w})")
        consume(n)
    final()
    g(f"s_cbranch_vccnz {R}\n{E}:")
    def retry():
        g(f"{R}:\ns_sub_u32 s57, s57, 1\ns_cbranch_scc1 {E}")
        for n in range(N):
            bad(n); g("s_wqm_b64 exec, vcc"); g(loads[n]); g(f"s_mov_b64 exec, {full}")
        g(f"s_waitcnt vmcnt(0)\ns_branch {L}")
    g.slow.append(retry)
NOP = lambda n: None

KR = 100
def key_wait(g):
    if g.o["kh"]:
        g(f"v_lshlrev_b32 v14, 7, v{vL}\ns_mov_b32 s58, {OFF_HK+12}\ns_mov_b32 exec_hi, 0")
        spin(g, ["buffer_load_dword v17, v14, s[16:19], s58 offen sc1"], NOP, lambda: g("v_cmp_ne_u32 vcc, s28, v17")); g.slow.pop()
        g("s_mov_b32 exec_hi, -1")
    g(f"v_lshrrev_b32 v14, 3, v{vL}\nv_lshlrev_b32 v14, 6, v14\nv_lshl_add_u32 v14, v{vL}, 3, v14\ns_mov_b32 s58, {OFF_KEY}\nv_mov_b32 v16, s28\ns_mov_b32 s30, 0")
    ld = [f"buffer_load_dwordx2 v[{KR+2*n}:{KR+2*n+1}], v14, s[16:19], s58 offen offset:{1024*n} sc1" for n in range(4)]
    for l in ld: g(l)
    gather(g, ld, lambda n: g(f"v_cmp_ne_u32 vcc, s28, v{KR+2*n+1}"),
           lambda n: g(f"v_xor_b32 v15, s28, v{KR+1}" if n == 0 else f"v_bitop3_b32 v15, v15, v{KR+2*n+1}, v16 bitop3:0xf6"),
           lambda: g("v_cmp_ne_u32 vcc, 0, v15"), waits=[0, None, None, None], tight=g.o["tight"] & 1)
def key_merge(g):
    L = g.lab("km"); g(f"{L}:")
    g(f"v_max_u32_dpp v92, v{KR+2}, v{KR} row_half_mirror {DPPM}\nv_max_u32_dpp v94, v{KR+6}, v{KR+4} row_half_mirror {DPPM}")
    (a, b), (t, _) = resort(g, [92, 94], [93, 95])
    g(f"v_max_u32_dpp v{a}, v{b}, v{a} row_half_mirror {DPPM}")
    (x,), (t,) = resort(g, [a], [t])
    return L, merge_wave(g, x, t, False)
def key_refine(g, Lm, x):
    R = g.lab("rf"); E = g.lab("rfe")
    g(f"s_cmp_lg_u32 s30, 0\ns_cbranch_scc1 {E}")
    g(f"v_min_u32_dpp v96, v{x}, v{x} quad_perm:[1,0,3,2] {DPPM}\nv_min_u32_dpp v96, v96, v96 quad_perm:[2,3,0,1] {DPPM}\nv_min_u32_dpp v96, v96, v96 row_half_mirror {DPPM}")
    from_key(g, 97, 96, 98)
    g("v_and_b32 v98, 0x7f800000, v97\nv_fmamk_f32 v98, v98, 0xbcc00000, v254\nv_sub_f32 v96, v97, v98")
    to_key(g, 96, 99)
    for n in range(4): g(f"v_cmp_ge_u32 s[{8+2*(n&1)}:{9+2*(n&1)}], v{KR+2*n}, v96\ns_bcnt1_i32_b64 s{12+n}, s[{8+2*(n&1)}:{9+2*(n&1)}]")
    g(f"s_add_u32 s12, s12, s13\ns_add_u32 s14, s14, s15\ns_add_u32 s12, s12, s14\ns_cmp_gt_u32 s12, 8\ns_cbranch_scc1 {R}\n{E}:")
    def slow():
        g(f"{R}:\ns_waitcnt vmcnt(0)\ns_mov_b32 s30, 1\nv_add_f32 v97, v97, v98\nv_mul_u32_u24 v91, 20, v{vL}")
        to_key(g, 97, 99)
        for n in range(4):
            k = KR + 2*n; A = g.lab("ra"); B = g.lab("rb"); P = g.lab("rp"); Q = g.lab("rq")
            g(f"v_cmp_ge_u32 s[8:9], v{k}, v96\nv_cmp_le_u32 vcc, v{k}, v97\ns_and_b64 s[8:9], s[8:9], vcc\n{A}:\ns_cmp_eq_u64 s[8:9], 0\ns_cbranch_scc1 {B}")
            g(f"s_ff1_i32_b64 s10, s[8:9]\ns_bitset0_b64 s[8:9], s10\nv_readlane_b32 s11, v{k}, s10")
            g(f"s_not_b32 s12, s11\ns_bfe_u32 s12, s12, 0x50009\ns_lshl_b32 s12, s12, 3\ns_and_b32 s13, s11, 7\ns_add_u32 s12, s12, s13\ns_mul_i32 s12, s12, 1280\ns_add_u32 s12, s12, {OFF_CN}")
            g(f"s_mov_b32 s57, {SPIN}\n{P}:\nbuffer_load_dwordx4 v[84:87], v91, s[16:19], s12 offen sc1\nbuffer_load_dword v88, v91, s[16:19], s12 offen offset:16 sc1\ns_waitcnt vmcnt(0)")
            g(f"v_max3_u32 v89, v84, v85, v86\nv_max3_u32 v89, v89, v87, v88\nv_cmp_eq_u32 vcc, -1, v89\ns_cbranch_vccz {Q}\ns_sub_u32 s57, s57, 1\ns_cbranch_scc0 {P}\n{Q}:\nv_mov_b32 v89, 0")
            for i in range(5): g(f"v_dot2c_f32_bf16 v89, v{vW5+i}, v{84+i}")
            wave_sum(g, [89], 90); to_key(g, 89, 90)
            g(f"s_and_b32 s11, s11, 0x3fff\nv_and_b32 v89, 0xffffc000, v89\nv_or_b32 v89, s11, v89\ns_lshl_b64 s[14:15], 1, s10\ns_mov_b64 exec, s[14:15]\nv_mov_b32 v{k}, v89\ns_mov_b64 exec, -1\ns_branch {A}\n{B}:")
        sort8(g, [KR + 2*n for n in range(4)], [KR + 2*n + 1 for n in range(4)])
        g(f"s_branch {Lm}")
    g.slow.append(slow)

def build(opt):
    g = G(opt)
    g("s_cmp_ge_u32 s2, 256\ns_cbranch_scc0 L_go\ns_endpgm\nL_go:")
    g("s_load_dwordx16 s[32:47], s[0:1], 0\ns_load_dwordx8 s[48:55], s[0:1], 64")
    if opt.get("stamps"): g("s_memrealtime s[96:97]\ns_memtime s[94:95]")
    if opt.get("lite"):
        for i in range(78, 92, 2): g(f"s_mov_b32 s{i}, 0")
    g(f"v_lshrrev_b32 v14, 6, v0\nv_and_b32 v{vL}, 63, v0\nv_readfirstlane_b32 s5, v14\ns_lshr_b32 s57, s2, 3")
    g("s_cmp_lg_u32 s5, 7\ns_cbranch_scc1 L_nopf")
    g(f"s_getpc_b64 s[20:21]\nL_pc:\ns_sub_u32 s20, s20, L_pc-{KN}\ns_subb_u32 s21, s21, 0\ns_and_b32 s21, s21, 0xffff\ns_mov_b32 s22, L_codeend-{KN}\ns_mov_b32 s23, 0x20000")
    g(f"s_lshl_b32 s58, s57, 7\nv_lshlrev_b32 v14, 12, v{vL}\ns_mov_b64 exec, 0xffff\nbuffer_load_dword v230, v14, s[20:23], s58 offen\ns_mov_b64 exec, -1")
    g(f"v_lshlrev_b32 v18, 4, v{vL}\nv_add_u32 v18, {L_FL}, v18\nv_mov_b32 v14, 0\nv_mov_b32 v15, 0\nv_mov_b32 v16, 0\nv_mov_b32 v17, 0\nds_write_b128 v18, v[14:17]\nL_nopf:")
    g("s_and_b32 s3, s2, 6\ns_lshl_b32 s3, s3, 2\ns_and_b32 s58, s57, 7\ns_add_u32 s3, s3, s58")
    g("s_and_b32 s4, s2, 1\ns_lshl_b32 s4, s4, 2\ns_lshr_b32 s58, s57, 3\ns_add_u32 s4, s4, s58")
    g("s_mul_i32 s7, s4, 5\ns_lshl1_add_u32 s7, s3, s7\ns_mul_i32 s58, s7, 205\ns_lshr_b32 s58, s58, 11\ns_mul_i32 s58, s58, 10\ns_sub_u32 s7, s7, s58")
    g("s_and_b32 s6, s5, 3\ns_cmp_ge_u32 s5, 4\ns_cbranch_scc1 L_E")

    def consts():
        if opt.get("stamps") == 1 and not opt.get("lite"):
            for i in range(77, 92): g(f"s_mov_b32 s{i}, 0")
        g(f"v_and_b32 v{vJ}, 15, v{vL}\nv_lshrrev_b32 v{vQ}, 4, v{vL}")
        g(f"s_mov_b32 s31, 0xffff0000\ns_mul_i32 s62, s6, 5120\ns_mov_b32 s64, {LOG2E}\ns_mov_b32 s65, {LOG2E}\ns_mov_b32 s66, 0x3f803f80")
        g(f"s_lshl_b32 s58, s6, 2\ns_add_u32 s58, s58, {L_FL}\nv_mov_b32 v{vFT}, s58\nv_and_b32 v14, 3, v{vL}\nv_lshlrev_b32 v14, 2, v14\nv_add_u32 v{vF4}, {L_FL}, v14")
    def roles():
        g("s_bitcmp1_b32 s3, 0\ns_mov_b32 s58, 0x43765210\ns_cselect_b32 s58, 0x43276510, s58\ns_mov_b32 s59, 0x00400000\ns_cselect_b32 s59, 0x00088400, s59")
        g("s_lshl_b32 s56, s4, 2\ns_lshr_b32 s58, s58, s56\ns_and_b32 s0, s58, 7\ns_lshr_b32 s59, s59, s56\ns_and_b32 s1, s59, 15\ns_bfe_u32 s59, s3, 0x20001\ns_add_u32 s1, s1, s59")
        g("s_and_b32 s59, s2, 7\ns_mul_i32 s70, s59, 6\ns_mul_i32 s59, s59, 5\ns_add_u32 s59, s59, 42")
        g("s_cmp_lt_u32 s1, 6\ns_cselect_b32 s70, s70, s59\ns_add_u32 s70, s70, s1\ns_cmp_eq_u32 s1, 11\ns_cselect_b32 s70, 88, s70")
    def tag():
        g("s_mul_i32 s28, s28, 0x9e3779b5\ns_add_u32 s28, s28, 0x7f4a7c15")
    def prod(i, d):
        if i == 0: return f"s_mov_b32 s{d}, s4\n"
        return f"s_and_b32 s{d}, s3, 7\ns_add_u32 s{d}, s{d}, {i}\ns_cmp_ge_u32 s{d}, 8\ns_addc_u32 s{d}, s{d}, s4\ns_and_b32 s{d}, s{d}, 7\n"
    def wo_setup(va):
        g(f"v_bfe_u32 v14, v{vL}, 2, 2\nv_xor_b32 v15, v14, v{vQ}\nv_lshlrev_b32 v15, 6, v15\nv_and_b32 v16, 3, v{vL}\nv_lshl_add_u32 v15, v16, 4, v15\nv_mul_u32_u24 v17, 1280, v{vQ}\nv_add_u32 v{va}, v15, v17")
        g("s_mul_i32 s29, s6, 25600\ns_lshl_b32 s58, s0, 8\ns_add_u32 s29, s29, s58")
        g.srd(24, 38, 640*1280)
    def wo_pieces(c, va):
        out = []
        for i in range(5):
            t = prod(c, 30) + f"s_mul_i32 s30, s30, {80*1280}\ns_add_u32 s30, s30, s29\n" if i == 0 else f"s_add_u32 s30, s30, {4*1280}\n"
            out.append(f"s_add_u32 m0, s62, {S[WSL[c]]+1024*i}\n" + t + f"buffer_load_dwordx4 v{va}, s[24:27], s30 offen lds")
        return out

    def poison():
        g(f"v_mov_b32 v20, -1\nv_mov_b32 v21, -1\nv_mov_b32 v22, -1\nv_mov_b32 v23, -1\nv_mul_u32_u24 v14, 1280, v{vQ}\nv_lshl_add_u32 v14, v{vJ}, 4, v14")
        g(f"s_lshr_b32 s58, s6, 1\ns_mul_i32 s58, s58, {256*1280}\ns_and_b32 s59, s6, 1\ns_mul_i32 s59, s59, 5120\ns_add_u32 s58, s58, s59")
        g(f"s_mul_i32 s59, s3, 10240\ns_add_u32 s58, s58, s59\ns_lshl_b32 s59, s0, 8\ns_add_u32 s58, s58, s59\ns_add_u32 s58, s58, {OFF_CN}")
        g("buffer_store_dwordx4 v[20:23], v14, s[16:19], s58 offen sc1")

    WRR, XR = 232, 240
    def esetup():
        g("L_E:")
        consts(); w_dma_addr(g)
        g("s_waitcnt lgkmcnt(0)\ns_load_dword s28, s[54:55], 12")
        chunk_offsets(g); roles()
        g.srd(12, 34, 640*3840); g.srd(16, 54, WS_END); g.srd(20, 36, 32*800)
        phi_waddr(g, 86)
        g(f"s_lshl_b32 s58, s6, 6\nv_add_u32 v14, s58, v{vL}\nv_lshlrev_b32 v84, 4, v14\nv_cmp_gt_u32 vcc, 200, v14\nv_mov_b32 v15, 0x7ff00000\nv_cndmask_b32 v84, v15, v84, vcc")
        g(f"s_min_u32 s74, s0, 4\nv_lshrrev_b32 v16, 5, v{vL}\nv_lshlrev_b32 v85, 5, v16")
        g("s_lshr_b32 s59, s6, 1\ns_lshl1_add_u32 s58, s74, s59\ns_sub_u32 s58, s58, s7\ns_cselect_b32 s59, 10, 0\ns_add_u32 s58, s58, s59\ns_lshl_b32 s58, s58, 11")
        g(f"s_add_u32 s58, s58, {S[3]}\ns_and_b32 s59, s6, 1\ns_lshl_b32 s59, s59, 2")
        g(f"v_lshl_add_u32 v16, v16, 1, s59\nv_lshrrev_b32 v17, 1, v{vJ}\nv_xor_b32 v16, v16, v17\nv_lshlrev_b32 v16, 4, v16\nv_lshl_add_u32 v16, v{vJ}, 7, v16")
        g(f"v_and_b32 v17, 1, v{vQ}\nv_mul_u32_u24 v17, {SLOT}, v17\nv_add3_u32 v10, v16, v17, s58\nv_xor_b32 v11, 16, v10")
        g(f"v_lshrrev_b32 v14, 5, v{vL}\nv_bfe_u32 v15, v{vL}, 2, 2\nv_lshl_add_u32 v14, v14, 3, v15\ns_lshl_b32 s58, s6, 6\nv_add_u32 v14, s58, v14")
        g(f"v_and_b32 v15, 1, v{vQ}\nv_and_b32 v16, 3, v{vL}\nv_lshl_add_u32 v15, v15, 2, v16")
        g(f"v_and_b32 v16, 1, v15\nv_mul_u32_u24 v16, 40, v16\nv_mul_u32_u24 v17, 80, v14\nv_add_u32 v16, v16, v17\nv_add_u32 v21, {S_PK+32}, v16")
        g(f"v_lshrrev_b32 v17, 1, v15\nv_lshl_add_u32 v16, v17, 3, v16\nv_add_u32 v20, {S_PK}, v16")
        g(f"v_min_u32 v15, 5, v15\nv_mul_u32_u24 v14, 48, v14\nv_lshl_add_u32 v14, v15, 3, v14\nv_add_u32 v22, {M_VX}, v14")
        g(f"s_lshl_b32 s58, s6, 4\nv_lshl_add_u32 v14, v{vQ}, 6, v{vJ}\nv_add_u32 v14, s58, v14\nv_mul_u32_u24 v14, 80, v14\nv_add_u32 v23, {S_PK}, v14")
        g(f"s_mul_i32 s58, s6, 3072\ns_add_u32 s58, s58, {M_VX}\nv_lshl_add_u32 v19, v{vL}, 4, s58")
        g(f"v_and_b32 v14, 31, v{vL}\nv_lshrrev_b32 v15, 5, v{vL}\nv_mad_u32_u24 v14, v15, 24, v14\nv_lshlrev_b32 v18, 4, v14")
        g(f"s_lshl2_add_u32 s71, s4, s6\ns_mul_i32 s71, s71, {4*32*768}\ns_mul_i32 s59, s3, 768\ns_add_u32 s71, s71, s59\ns_add_u32 s71, s71, {OFF_P}")
        g.srd(24, 42, 1280)
        g("s_branch L_E1")

    NX = opt.get('nx', 5)
    g(f"v_lshrrev_b32 v14, 3, v{vL}\nv_and_b32 v15, 7, v{vL}\nv_lshrrev_b32 v16, 1, v14\nv_xor_b32 v15, v15, v16\nv_lshlrev_b32 v15, 4, v15")
    g(f"v_mul_u32_u24 v14, 1280, v14\nv_add_u32 v18, v14, v15\nv_xor_b32 v15, 64, v15\nv_add_u32 v19, v14, v15\nv_add_u32 v19, {8*1280-1024}, v19")
    g(f"s_lshl2_add_u32 s67, s3, s6\ns_mul_i32 s67, s67, 20480\ns_mov_b32 s10, {2048*1280}\ns_mov_b32 s11, 0x20000\ns_mul_i32 s63, s6, {SLOT}\ns_add_u32 s63, s63, {S[3]}")
    g("s_lshl_b32 s68, s7, 7\ns_add_u32 s68, s68, s67\ns_add_u32 s69, s67, 1280\ns_waitcnt lgkmcnt(0)\ns_mov_b32 s8, s32\ns_and_b32 s9, s33, 0xffff")
    def xdma(i):
        g(f"s_add_u32 m0, s63, {2048*i}\ns_add_u32 s58, s68, 128\nbuffer_load_dwordx4 v18, s[8:11], s68 offen lds\nbuffer_load_dwordx4 v19, s[8:11], s68 offen offset:1024 lds")
        if i != 9: g("s_cmp_eq_u32 s58, s69\ns_cselect_b32 s68, s67, s58")
    g.lite("ka")
    for i in range(NX): xdma(i)
    g.lite("xi")
    VK = opt["vk"]
    if VK:
        g.srd(12, 34, 640*3840)
        g(f"s_mul_i32 s58, s6, 7\nv_add_u32 v14, s58, v{vL}\nv_min_u32 v14, 24, v14\nv_mul_u32_u24 v15, 13108, v14\nv_lshrrev_b32 v15, 16, v15\nv_mul_u32_u24 v15, {3840-640}, v15\nv_lshl_add_u32 v14, v14, 7, v15")
        g(f"s_and_b32 s59, s4, 3\ns_lshl2_add_u32 s58, s3, s59\ns_mul_i32 s58, s58, {5*3840}\ns_lshr_b32 s59, s4, 2\ns_mul_i32 s59, s59, 640\ns_add_u32 s58, s58, s59\ns_mov_b64 exec, 0x7f")
        for k in range(VK): g(f"buffer_load_dword v255, v14, s[12:15], s58 offen offset:{1280*(k+1)}")
        g("s_mov_b64 exec, -1")
    consts(); w_tr_addr(g)
    g(f"v_lshrrev_b32 v14, 1, v{vJ}\nv_xor_b32 v14, v14, v{vQ}\nv_lshlrev_b32 v14, 4, v14\nv_lshl_add_u32 v14, v{vJ}, 7, v14\nv_add_u32 v20, s63, v14\nv_xor_b32 v21, 64, v20")
    g(f"s_lshl_b32 s58, s6, 4\nv_lshl_add_u32 v14, v{vQ}, 6, v{vJ}\nv_add_u32 v23, s58, v14")
    g(f"v_mul_u32_u24 v14, 48, v23\nv_add_u32 v247, {M_VX}, v14\ns_mul_i32 s58, s6, 3072\ns_add_u32 s58, s58, {M_VX}\nv_lshl_add_u32 v246, v{vL}, 4, s58")
    g(f"v_mov_b32 v{PB+10}, s66\nv_mov_b32 v{PB+11}, s66\ns_mov_b32 s72, 0x3f80\ns_mov_b32 s73, 0x3f800000")
    roles(); phi_waddr(g, 22); sort_consts(g)
    g.srd(16, 54, WS_END); g.srd(20, 42, 1280); g(f"v_mul_u32_u24 v245, 20, v{vL}")
    g("v_mov_b32 v14, 0\nv_mov_b32 v16, 0")
    lg = Lgkm(g); xi = {}
    for i in range(11):
        if i < 10:
            if i == opt["j1"]: g.page(fill=esetup)
            if i + NX < 10: xdma(i + NX)
            if i + NX == 9: g("s_barrier")
            g(f"s_waitcnt vmcnt({2*(min(9, i + NX) - i) + (VK if i < NX else 0)})")
            g.lite(f"x{i}")
            xi[i] = lg.op(f"ds_read_b128 v[{XF+8*i}:{XF+8*i+3}], v20 offset:{2048*i}\nds_read_b128 v[{XF+8*i+4}:{XF+8*i+7}], v21 offset:{2048*i}")
            if i == 9: lg.op(g.fset_t(F_XR))
        if i > 0:
            lg.wait(xi[i-1])
            for r in range(XF + 8*i - 8, XF + 8*i): g(f"v_dot2c_f32_bf16 v14, s66, v{r}\nv_dot2c_f32_bf16 v16, v{r}, v{r}")
    g.stamp(1, "x")
    g("s_load_dword s28, s[54:55], 12")
    g("v_permlane32_swap_b32 v14, v16\nv_add_f32 v14, v14, v16\nv_mov_b32 v16, v14\nv_permlane16_swap_b32 v14, v16\nv_add_f32 v14, v14, v16\nv_mov_b32 v16, v14\nv_permlane32_swap_b32 v14, v16")
    g.ln_scalars(14, 16, 18, 19, 15)
    def norm(n):
        T_ = 136 + 8*(n & 1)
        for q in range(4): g(f"v_dot2_f32_bf16 v{T_+2*q}, v{XF+4*n+q}, s72, v18\nv_dot2_f32_bf16 v{T_+2*q+1}, v{XF+4*n+q}, s73, v18")
        for q in range(8): g.rnd(T_+q, T_+q)
        for q in range(4): g(f"v_pk_mul_f32 v[{T_+2*q}:{T_+2*q+1}], v[{T_+2*q}:{T_+2*q+1}], v[18:19] op_sel:[0,1] op_sel_hi:[1,1]")
        for q in range(4): g(cvt(XF+4*n+q, T_+2*q))
    for n in range(18): norm(n)
    g.stamp(2)
    L0 = opt["l0"]
    g(g.fget_t(F_LAND + L0, 14))
    norm(18)
    g("s_waitcnt lgkmcnt(0)"); g.fcheck(F_LAND + L0, 14)
    def kout(part):
        def f(lg):
            for i in range(4*part, min(10, 4*part + 4)): g(cvt(PB+i, AC+2*i))
            if part < 2: lg.op(f"ds_write_b128 v246, v[{PB+4*part}:{PB+4*part+3}] offset:{1024*part}")
            else: lg.op(f"ds_write_b64 v246, v[{PB+8}:{PB+9}] offset:2048"); lg.op(g.fset_t(F_KR))
        return f
    late = opt["late"]; ge = 14 - late
    gemm(g, 0, 10, range(L0 + 1, 10), (0, 1, 2) + tuple(range(5, ge - 5)), ev={99: kout(0), 101: kout(1), 102: kout(2)}, pre=lambda lg: norm(19))
    for i in range(3):
        for q in range(4*i, min(10, 4*i + 4)): g(cvt(PB+q, AC2+2*q))
        g(f"ds_write_b128 v247, v[{PB+4*i}:{PB+4*i+3}] offset:{16*i}")
    g("s_waitcnt lgkmcnt(0)")
    g.stamp(3, "vd")
    g("s_barrier")
    g.stamp(4, "bkv")
    g(f"buffer_load_dwordx4 v[{vW5}:{vW5+3}], v245, s[20:23], 0 offen\nbuffer_load_dword v{vW5+4}, v245, s[20:23], 0 offen offset:16")
    tag(); wo_setup(253)
    g(f"v_lshrrev_b32 v16, 5, v{vL}\nv_and_b32 v17, 31, v{vL}\ns_add_u32 s58, s62, {S_PQ}\nv_lshl_add_u32 v14, v17, 4, s58")
    g("v_lshl_add_u32 v252, v16, 11, v14\nv_lshl_add_u32 v245, v16, 3, v14")
    g("v_lshrrev_b32 v15, 2, v17\nv_lshlrev_b32 v15, 2, v15\ns_mov_b32 s58, 0x55443120\nv_lshrrev_b32 v15, v15, s58\nv_and_b32 v15, 7, v15")
    g("v_and_b32 v17, 3, v17\nv_lshl_add_u32 v17, v15, 2, v17\nv_mad_u32_u24 v17, v16, 24, v17\nv_lshlrev_b32 v251, 4, v17")
    g(f"s_lshl2_add_u32 s71, s4, s6\ns_mul_i32 s71, s71, 3072\ns_add_u32 s71, s71, {OFF_F}")
    g(f"v_lshlrev_b32 v14, 12, v{vQ}\nv_lshl_add_u32 v14, v23, 4, v14\nv_add_u32 v23, {S_PQ}, v14")
    g(f"s_mul_i32 s72, s3, {8*OBLK}\ns_mul_i32 s58, s6, {OHD}\ns_add_u32 s72, s72, s58\ns_add_u32 s72, s72, {OFF_O}\ns_mul_i32 s69, s4, {OBLK}\ns_add_u32 s69, s69, s72")
    g(f"v_lshlrev_b32 v4, 4, v{vL}\ns_lshl_b32 s58, s6, 11\ns_add_u32 s58, s58, {S_O}\nv_add_u32 v6, s58, v4\nv_add_u32 v7, {S_O2-S_O}, v6")
    g(f"s_lshl_b32 s58, s6, 9\ns_add_u32 s58, s58, {8192+S_O}\nv_lshl_add_u32 v8, v{vL}, 3, s58\nv_add_u32 v5, {S_O2-S_O}, v8\nv_cmp_le_u32 s[74:75], 32, v{vL}")
    if opt["fpre"]: g(f"v_lshlrev_b32 v15, 7, v{vL}\ns_mov_b64 exec, 0xffffff\nbuffer_load_dword v255, v15, s[16:19], s71 offen sc1\ns_mov_b64 exec, -1")
    phi_wload(g, 188, 22); g("s_waitcnt lgkmcnt(0)")
    gemm(g, 10, 5, range(2, 5), (1, 2, 3), ev={opt["j2"]: lambda lg: g.page()})
    g.stamp(5)
    g(g.fget_t(F_REL + 12, 20))
    for i in range(10): g(cvt(PB+i, AC+2*i))
    planes = ((EP, EP+2, EP+4, EP+6), (EP+8, EP+10, EP+12, EP+14), (EN, EN+2, EN+4, EN+6), (EN+8, EN+10, EN+12, EN+14), (EP+16, EP+18, EN+16, EN+18))
    def qput(pls):
        if pls[0] == 0: g("s_waitcnt lgkmcnt(0)"); g.fcheck(F_REL + 12, 20)
        for pl in pls:
            for q in range(4): g(cvt(PP+4*pl+q, planes[pl][q]))
            g(f"ds_write_b128 v23, v[{PP+4*pl}:{PP+4*pl+3}] offset:{1024*pl}")
    g.lite("q1"); phi(g, 188, True, (lambda: qput((0, 1))) if opt["sm"] & 1 else None); g.lite("q4")
    QB, FA, OD = 24, 48, 64
    for r in (QB+10, QB+11, QB+22, QB+23, 98, 99): g(f"v_mov_b32 v{r}, 0")
    ld = [f"buffer_load_dwordx4 v[{FA+4*q}:{FA+4*q+3}], v251, s[16:19], s71 offen offset:{768*q} sc1" for q in range(4)]
    qput((2, 3, 4) if opt["sm"] & 1 else range(5))
    g.fset(F_PQ); g.lite("q5")
    for l in ld: g(l)
    g.fwait(F_PQ, 15)
    for tau in range(2):
        r = QB + 12*tau
        g(f"ds_read_b128 v[{r}:{r+3}], v252 offset:{512*tau}\nds_read_b128 v[{r+4}:{r+7}], v252 offset:{1024+512*tau}\nds_read_b64 v[{r+8}:{r+9}], v245 offset:{4096+512*tau}")
    g.stamp(6, "phq")
    g("v_mov_b32 v107, s28")
    FT = (FA, FA+7, FA+8, FA+15)
    gather(g, ld, lambda n: g(f"v_cmp_ne_u32 vcc, s28, v{FT[n]}"),
           lambda n: g(f"v_xor_b32 v15, s28, v{FA}" if n == 0 else f"v_bitop3_b32 v15, v15, v{FT[n]}, v107 bitop3:0xf6"),
           lambda: g("v_cmp_ne_u32 vcc, 0, v15"), waits=[0, None, None, None])
    g(f"v_lshl_or_b32 v96, v{FA+6}, 16, v{FA+1}\nv_lshl_or_b32 v97, v{FA+14}, 16, v{FA+9}\ns_waitcnt lgkmcnt(0)")
    g.retries("rF"); g.stamp(7, "F")
    for tau in range(2):
        d = OD + 16*tau; b = QB + 12*tau
        g(mfma32(d, FA+2, b, True)); g(mfma32(d, FA+10, b+4, False)); g(mfma32(d, 96, b+8, False))
    for tau in range(2):
        d = OD + 16*tau; o = 100 + 8*tau
        g.rnd(d+12, d+12); g(f"v_add_f32 v{d+12}, 0x358637bd, v{d+12}"); g.rnd(d+12, d+12); g(f"v_rcp_f32 v{d+12}, v{d+12}")
        for i in range(8): g.rnd(d+i, d+i)
        if tau == 0:
            for i in range(8): g(f"v_mul_f32 v{d+i}, v{d+12}, v{d+i}")
        else:
            for i in range(0, 8, 2): g(f"v_pk_mul_f32 v[{d+i}:{d+i+1}], v[{d+i}:{d+i+1}], v[{d+12}:{d+13}] op_sel_hi:[1,0]")
        for i in range(4): g(cvt(o+i, d+2*i))
        g(f"buffer_store_dwordx4 v[{o}:{o+3}], v4, s[16:19], s69 offen offset:{1024*tau} sc1")
    d = OD + 8
    for i in range(5): g(f"v_cndmask_b32 v{d+i}, v{d+i}, v{d+16+i}, s[74:75]")
    for i in range(4): g.rnd(d+i, d+i)
    for i in (0, 2): g(f"v_pk_mul_f32 v[{d+i}:{d+i+1}], v[{d+i}:{d+i+1}], v[{d+4}:{d+5}] op_sel_hi:[1,0]")
    g(cvt(104, d)); g(cvt(105, d+2))
    g("v_add3_u32 v106, s28, v100, v101\nv_add3_u32 v106, v106, v102, v103\nv_add3_u32 v106, v106, v108, v109\nv_add3_u32 v106, v106, v110, v111\nv_add3_u32 v106, v106, v104, v105")
    g("buffer_store_dwordx4 v[104:107], v4, s[16:19], s69 offen offset:2048 sc1")
    g.stamp(8, "opub")
    g("s_cmp_ge_u32 s0, 5\ns_cbranch_scc1 L_G_aux")

    def o_put(i, a, b, c):
        base = (i % 4) * 10240
        g(f"ds_write_b128 v{6 + i//4}, v[{a}:{a+3}] offset:{base}\nds_write_b128 v{6 + i//4}, v[{b}:{b+3}] offset:{base+1024}\nds_write_b64 v{(8, 5)[i//4]}, v[{c}:{c+1}] offset:{base}")
        g.fset(F_OS + i)
    g.fwait(F_WOR, 15)
    g.lite("wor"); o_put(0, 100, 108, 104); g.lite("op0")
    vm = Vm(g); oend = {}
    wat = dict(zip((5, 6, 7), opt["wat"]))
    def w_ld(i):
        for c in (5, 6, 7):
            if wat[c] == i:
                if c == 7: g.fwait(F_OS, 15)
                for p in wo_pieces(c, 253): vm.op(p)
    w_ld(1)
    for i in range(1, 8): g(prod(i, 58) + f"s_mul_i32 s58, s58, {OBLK}\ns_add_u32 s{35+i}, s58, s72")
    held = g.slow; g.slow = []
    g.page()
    vm.wait(0)
    g.stamp(9, "oh")
    OR = lambda i: 140 + 12*i
    def o_ld(i): return "\n".join(f"buffer_load_dwordx4 v[{OR(i)+4*q}:{OR(i)+4*q+3}], v4, s[16:19], s{35+i} offen offset:{1024*q} sc1" for q in range(3))
    for i in range(1, 8):
        r = OR(i)
        while len(oend) < min(7, i + opt["oahead"][i > 1]):
            nx = len(oend) + 1
            if nx > 1: w_ld(nx)
            oend[nx] = vm.op(o_ld(nx))
            if nx == 7: poison(); vm.n += 1
        if i == 1:
            g("v_mov_b32 v125, 0")
            for k in range(5): g(f"v_dot2c_f32_bf16 v125, s66, v{vW5+k}")
            wave_sum(g, [125], 18)
        def cons(n):
            g(f"v_add3_u32 v17, s28, v{r}, v{r+1}")
            for q in range(2, 10, 2): g(f"v_add3_u32 v17, v17, v{r+q}, v{r+q+1}")
        gather(g, [o_ld(i)], NOP, cons, lambda: g(f"v_cmp_ne_u32 vcc, v17, v{r+10}"), waits=[vm.n - oend[i]])
        g.retries(f"r{i}"); g.lite(f"og{i}")
        o_put(i, r, r + 4, r + 8); g.lite(f"op{i}")
        if i % 3 == 2: g("s_waitcnt lgkmcnt(4)")
    g.stamp(10)
    g(f"v_add_u32 v15, {L_SP}, v4\ns_mul_i32 s73, s3, 5120\ns_add_u32 s73, s73, {OFF_ST}\ns_lshl_b32 s58, s0, 10\ns_add_u32 s58, s58, s73\ns_add_u32 s59, s73, 4096")
    g(f"s_lshl_b32 s56, s3, 6\ns_sub_u32 s56, 2047, s56\nv_sub_u32 v60, s56, v{vL}\nv_lshlrev_b32 v60, 3, v60\nv_lshlrev_b32 v61, 3, v{vL}\nv_add_u32 v62, {L_MR}, v4")
    g(f"v_lshlrev_b32 v63, 2, v{vL}\nv_add_u32 v63, {L_TOP}, v63\nv_mov_b32 v65, s28\ns_lshl_b32 s68, s3, 7\ns_add_u32 s68, s68, {OFF_KEY}\ns_mov_b32 s67, 0xffffc000")
    g(f"v_lshlrev_b32 v14, 7, v{vL}\ns_lshl_b32 s60, s3, 10\ns_add_u32 s60, s60, {OFF_HS+12}\ns_cmp_eq_u32 s6, 0")
    if opt["sp"] & 1: g("s_cselect_b32 s56, s73, 0x7ff00000\ns_mov_b32 exec_hi, 0xff\nbuffer_load_dword v40, v14, s[16:19], s56 offen sc1")
    if opt["sp"] & 2: g("s_cselect_b32 s56, s60, 0x7ff00000\ns_mov_b64 exec, 31\nbuffer_load_dword v40, v14, s[16:19], s56 offen sc1")
    if opt["sp"] & 4: g("s_cselect_b32 s56, s58, 0x7ff00000\ns_mov_b64 exec, 0xff\nbuffer_load_dword v40, v14, s[16:19], s56 offen sc1")
    if opt["sp"] & 8: g(f"s_cselect_b32 s56, s68, 0x7ff00000\ns_cmp_eq_u32 s0, {opt['kc']}\ns_cselect_b32 s56, s56, 0x7ff00000\ns_mov_b64 exec, 1\nbuffer_load_dword v40, v14, s[16:19], s56 offen sc1")
    g(f"s_mov_b64 exec, -1\ns_add_u32 s61, s68, {OFF_HK - OFF_KEY + 12}\ns_cmp_eq_u32 s0, {opt['kc']}\ns_cselect_b32 s61, s61, 0x7ff00000")
    g("s_waitcnt vmcnt(0)\ns_barrier")
    g("s_cmp_lg_u32 s6, 0\ns_cbranch_scc1 L_B_join")
    for i in range(4): g(f"ds_read_b96 v[{24+4*i}:{26+4*i}], v15 offset:{1024*i}")
    g("v_mov_b32 v27, s28\ns_waitcnt lgkmcnt(2)\nv_pk_add_f32 v[24:25], v[24:25], v[28:29]\nv_add_f32 v26, v26, v30\ns_waitcnt lgkmcnt(0)")
    g("v_pk_add_f32 v[32:33], v[32:33], v[36:37]\nv_add_f32 v34, v34, v38\nv_pk_add_f32 v[24:25], v[24:25], v[32:33]\nv_add_f32 v26, v26, v34")
    g("buffer_store_dwordx4 v[24:27], v4, s[16:19], s58 offen sc1")
    g.stamp(11, "st")
    if opt["kh"] == 3: g("s_mov_b64 exec, 1\nbuffer_store_dword v65, v4, s[16:19], s61 offen sc1\ns_mov_b64 exec, -1")
    if opt["sh"]:
        g("s_mov_b64 exec, 31")
        spin(g, ["buffer_load_dword v40, v14, s[16:19], s60 offen sc1"], NOP, lambda: g("v_cmp_ne_u32 vcc, s28, v40"))
        g("s_mov_b64 exec, -1")
    g.lite("sta")
    KH = opt["kh"]
    khs = "s_mov_b64 exec, 1\nbuffer_store_dword v65, v4, s[16:19], s61 offen sc1\ns_mov_b64 exec, -1"
    ld = [f"buffer_load_dwordx4 v[{40+4*i}:{43+4*i}], v4, s[16:19], s73 offen offset:{1024*i} sc1" for i in range(4)] + ["buffer_load_dwordx4 v[56:59], v4, s[16:19], s59 offen sc1"]
    for l in ld: g(l)
    if KH == 1: g(khs)
    gather(g, ld, lambda n: g(f"v_cmp_ne_u32 vcc, s28, v{43+4*n}"),
           lambda n: g("v_xor_b32 v15, s28, v43" if n == 0 else f"v_bitop3_b32 v15, v15, v{43+4*n}, v65 bitop3:0xf6"),
           lambda: g("v_cmp_ne_u32 vcc, 0, v15"), waits=[int(KH == 1), None, None, None, None])
    if KH == 2: g(khs)
    g.retries("rst"); g.stamp(12, "sts")
    g("v_pk_add_f32 v[40:41], v[40:41], v[44:45]\nv_pk_add_f32 v[48:49], v[48:49], v[52:53]\nv_pk_add_f32 v[40:41], v[40:41], v[56:57]\nv_pk_add_f32 v[40:41], v[40:41], v[48:49]")
    g("v_add_f32 v42, v42, v46\nv_add_f32 v50, v50, v54\nv_add_f32 v42, v42, v58\nv_add_f32 v42, v42, v50")
    g.ln_scalars(40, 41, 44, 45, 46)
    g("v_fmac_f32 v42, v44, v125\nv_mul_f32 v42, v42, v45")
    to_key(g, 42, 46)
    g("v_and_or_b32 v46, v42, s67, v60\nv_mov_b32 v42, v46\nds_write_b96 v62, v[44:46]")
    sort8(g, [42], [43])
    x = merge_wave(g, 42, 43, True)
    g(f"v_or_b32 v64, v{x}, v{vL}\ns_mov_b64 exec, 0xff")
    g(f"s_cmp_lg_u32 s0, {opt['kc']}\ns_cbranch_scc1 L_nokey")
    g("buffer_store_dwordx2 v[64:65], v61, s[16:19], s68 offen sc1\nL_nokey:\nds_write_b32 v63, v64\ns_mov_b64 exec, -1\ns_waitcnt lgkmcnt(0)")
    g.stamp(13, "key")
    g("L_B_join:")
    g.srd(24, 50, 2048*1280)
    g(f"s_lshl_b32 s58, s5, 2\ns_add_u32 s58, s58, {L_TOP}\nv_mov_b32 v16, s58\nv_mov_b32 v17, {L_TOP+28}")
    g(f"s_lshl_b32 s58, s5, 3\nv_add_u32 v21, s58, v{vQ}\nv_add_u32 v22, 4, v21")
    def rowaddr(k):
        g(f"v_and_b32 v{84+k}, 7, v{20+k}\nv_xor_b32 v{84+k}, v{84+k}, v{vJ}\nv_lshlrev_b32 v{84+k}, 4, v{84+k}\nv_lshl_add_u32 v{84+k}, v{20+k}, 8, v{84+k}\nv_add_u32 v{84+k}, {S_HT}, v{84+k}")
        g(f"v_lshlrev_b32 v{88+k}, 4, v{20+k}\nv_add_u32 v{88+k}, {L_MR}, v{88+k}")
    rowaddr(1); rowaddr(2)
    g(f"s_lshl3_add_u32 s60, s3, s5\ns_mul_i32 s60, s60, 1280\ns_lshl_b32 s59, s0, 8\ns_add_u32 s60, s60, s59\ns_add_u32 s60, s60, {OFF_CN}")
    g(f"s_add_u32 s61, s60, {256*1280}\ns_mul_i32 s56, s3, {64*1280}\ns_add_u32 s56, s56, s59\nv_lshlrev_b32 v18, 4, v{vJ}")
    g("s_barrier")
    g("ds_read_b32 v20, v16\nds_read_b32 v19, v17\ns_waitcnt lgkmcnt(1)\nv_not_b32 v20, v20\nv_bfe_u32 v20, v20, 3, 6")
    rowaddr(0)
    for k in range(3): g(f"ds_read_b128 v[{24+8*k}:{27+8*k}], v{84+k}\nds_read_b96 v[{28+8*k}:{30+8*k}], v{88+k}")
    for k in range(3):
        h = 24 + 8*k; mr = h + 4; o = 68 + 4*k
        g(f"v_mul_u32_u24 v{80+k}, 1280, v{20+k}\nv_add_u32 v{80+k}, v{80+k}, v18\ns_waitcnt lgkmcnt({4-2*k})")
        for q in range(4): g(f"v_lshlrev_b32 v{48+2*q}, 16, v{h+q}\nv_and_b32 v{49+2*q}, s31, v{h+q}")
        for q in range(4): g(f"v_pk_add_f32 v[{56+2*q}:{57+2*q}], v[{48+2*q}:{49+2*q}], v[{mr}:{mr+1}] op_sel_hi:[1,0]")
        for q in range(8): g.rnd(56+q, 56+q)
        for q in range(4): g(f"v_pk_mul_f32 v[{56+2*q}:{57+2*q}], v[{56+2*q}:{57+2*q}], v[{mr}:{mr+1}] op_sel:[0,1] op_sel_hi:[1,1]")
        if k == 0:
            for q in range(4): g(cvt(64+q, 56+2*q))
            g("s_mov_b64 exec, 0xffff\nbuffer_store_dwordx4 v[64:67], v18, s[16:19], s60 offen sc1\ns_mov_b64 exec, -1")
        for q in range(8): g.rnd(56+q, 56+q)
        for q in range(4): g(f"v_pk_add_f32 v[{56+2*q}:{57+2*q}], v[{56+2*q}:{57+2*q}], v[{48+2*q}:{49+2*q}]")
        for q in range(4): g(cvt(o+q, 56+2*q))
        if k == 0: g(f"s_mov_b64 exec, 0xffff\nbuffer_store_dwordx4 v[{o}:{o+3}], v80, s[24:27], s56 offen sc1\ns_mov_b64 exec, -1")
    g("v_and_b32 v19, -8, v19\nv_cmp_lt_u32 s[62:63], v38, v19\nv_cmp_lt_u32 s[64:65], v46, v19")
    g("s_waitcnt vmcnt(0)\ns_mov_b64 exec, 0xffff\nbuffer_store_dwordx4 v[24:27], v18, s[16:19], s61 offen sc1")
    for k in (1, 2): g(f"s_mov_b64 exec, s[{60+2*k}:{61+2*k}]\nbuffer_store_dwordx4 v[{68+4*k}:{71+4*k}], v{80+k}, s[24:27], s56 offen sc1")
    g("s_mov_b64 exec, -1")
    g.stamp(14)
    g.end()
    g.flush_slow()

    g.page(False); g("L_E1:")
    vm = Vm(g); cend = {}
    def chunk(c, sig=None):
        for i, p in enumerate(chunk_dma(c)):
            cend[c] = vm.op(p)
            if i == 1 and sig is not None: vm.wait(cend[sig]); g.fset(F_LAND + sig); g.lite(f"l{sig}")
    g.lite("ebx")
    g("s_setprio 2\ns_barrier")
    chunk(0)
    vm.op(f"s_mul_i32 s58, s4, 3200\ns_lshl_b32 s59, s6, 10\ns_add_u32 m0, s59, {M_WP}\nbuffer_load_dwordx4 v84, s[20:23], s58 offen lds")
    vm.op(f"s_lshl2_add_u32 s58, s74, s6\ns_lshl_b32 s58, s58, 6\nbuffer_load_dwordx4 v[{WRR}:{WRR+3}], v85, s[24:27], s58 offen\nbuffer_load_dwordx4 v[{WRR+4}:{WRR+7}], v85, s[24:27], s58 offen offset:16")
    d1 = chunk_dma(1)
    for p in d1[:2]: vm.op(p)
    g.fwait(F_XR, 14)
    for tau in range(2):
        g(f"ds_read_b128 v[{XR+8*tau}:{XR+8*tau+3}], v10 offset:{2*SLOT*tau}\nds_read_b128 v[{XR+8*tau+4}:{XR+8*tau+7}], v11 offset:{2*SLOT*tau}")
    g.fset(F_ER)
    for p in d1[2:]: cend[1] = vm.op(p)
    g.stamp(2)
    chunk(2, 0)
    g.stamp(1)
    tag()
    g.fwait(F_ER, 14)
    chunk(3, 1); chunk(4, 2)
    g.fwait(F_LAND + 1, 14)
    phi_wload(g, 24, 86)
    chunk(5, 3); chunk(6, 4)
    g.stamp(7)
    wo_setup(9)
    g("v_mov_b32 v81, s28\ns_mov_b32 s8, 0x07060501\ns_mov_b32 s9, 0x07060502\ns_mov_b32 s10, 0x07060503\ns_mov_b32 s11, 0x07060500\ns_mov_b32 s68, 0xffffff\ns_mov_b32 s69, 0xffffff")
    g.fwait(F_REL + 0, 14); chunk(7, 5)
    g.fwait(F_REL + 1, 14); chunk(8, 6)
    g.fwait(F_REL + 2, 14); chunk(9, 7)
    g.stamp(8)
    items = []
    def dma_items(c, need, sig):
        items.append(lambda: g(g.fget_t(need, 80)))
        items.append(lambda: (g("s_waitcnt lgkmcnt(0)"), g.fcheck(need, 80), 0)[-1])
        for i, p in enumerate(chunk_dma(c)):
            def f(i=i, p=p):
                cend[c] = vm.op(p)
                if i in sig: vm.wait(cend[sig[i]]); g.fset(F_LAND + sig[i])
            items.append(f)
    dma_items(10, F_KR, {0: 8, 4: 9})
    for c in range(11, ge + 1): dma_items(c, F_REL + c - 6, {})
    g.fwait(F_KR, 14, own=True)
    g.stamp(11, "kr")
    g(f"ds_read_b128 v[{PB}:{PB+3}], v19\nds_read_b128 v[{PB+4}:{PB+7}], v19 offset:1024\nds_read_b64 v[{PB+8}:{PB+9}], v19 offset:2048\ns_waitcnt lgkmcnt(0)")
    g.interleave(items, opt["gap"])
    def kput(pls):
        assert 10 in cend
        for i in pls:
            for q in range(4): g(cvt(PP+4*i+q, EP+8*i+2*q))
            g(f"ds_write_b128 v23, v[{PP+4*i}:{PP+4*i+3}] offset:{16*i}")
    phi(g, 24, False, (lambda: kput((0, 1))) if opt["sm"] & 2 else None)
    g.drain()
    kput((2, 3, 4) if opt["sm"] & 2 else range(5))
    KA, KB, KD = 104, 200, 24
    ard = lambda kp: tr2(KA + 8*kp, 20, 1280*kp, 1280*kp + 320) + "\n" + tr2(KA + 8*kp + 4, 21, 1280*kp, 1280*kp + 320)
    brd = lambda kp: tr2(KB + 4*kp, 22, 768*kp, 768*kp + 192)
    vm.wait(cend[11]); g("s_waitcnt lgkmcnt(0)")
    g.stamp(12, "rdy")
    g("s_barrier")
    lg = Lgkm(g); ki = {}
    def krd(kp): ki[kp] = lg.op(brd(kp) + "\n" + ard(kp))
    ahead = 2
    for kp in range(ahead): krd(kp)
    for kp in range(4):
        lg.wait(ki[kp])
        g(mfma32(KD + 16, KA + 8*kp + 4, KB + 4*kp, kp == 0)); g(mfma32(KD, KA + 8*kp, KB + 4*kp, kp == 0))
        if kp + ahead < 4: krd(kp + ahead)
    g.fset(F_PK)
    g("s_mov_b64 exec, s[68:69]")
    for q in range(4): g(f"v_add_u32 v{KD+16+q}, 0x80, v{KD+16+q}")
    for q in range(4):
        for i in range(4): g(f"v_perm_b32 v{KD+4*q+i}, v{KD+4*q+i}, v{KD+16+q if i < 3 else 81}, s{8+i}")
        vm.op(f"buffer_store_dwordx4 v[{KD+4*q}:{KD+4*q+3}], v18, s[16:19], s71 offen sc1")
        if q < 3: g(f"s_add_u32 s71, s71, {32*768}")
    g("s_mov_b64 exec, -1")
    g.stamp(4, "P")
    pst = vm.n
    for c in range(12, ge + 1): vm.wait(cend[c]); g.fset(F_LAND + c)
    for c in range(ge + 1, 15): chunk(c)
    vma = Vm(g, vm.n)
    g("s_cmp_ge_u32 s0, 5\ns_cbranch_scc1 L_E_aux\ns_branch L_E_B")
    g.page(False)
    g("L_E_aux:")
    g("s_sub_u32 s58, s0, 5\ns_lshl2_add_u32 s58, s58, s6\ns_mul_i32 s59, s58, 11\ns_lshr_b32 s59, s59, 5\ns_mul_i32 s56, s59, 3\ns_sub_u32 s56, s58, s56\ns_lshl_b32 s56, s56, 8")
    g(f"s_and_b32 s69, s59, 1\ns_lshl2_add_u32 s59, s3, s59\ns_mul_i32 s67, s59, {32*768}\ns_add_u32 s67, s67, s56\ns_add_u32 s67, s67, {OFF_P}\ns_mul_i32 s68, s59, 768\ns_add_u32 s68, s68, s56\ns_add_u32 s68, s68, {OFF_F}")
    g(f"v_mul_u32_u24 v14, 768, v{vQ}\nv_lshl_add_u32 v14, v{vJ}, 4, v14\ns_mov_b32 s8, 0x0c04000c\ns_mov_b32 s9, 0xffffff00\nv_mov_b32 v15, 0x80\nv_mov_b32 v64, s28\nv_mov_b32 v69, s28")
    vma.wait(pst)
    for c in range(ge + 1, ge + 1 + opt["asig"]): vma.wait(cend[c]); g.fset(F_LAND + c)
    g.stamp(6, "gs")
    R = lambda n: 104 + 4*n
    ld = [f"s_add_u32 s58, s67, {3072*n}\nbuffer_load_dwordx4 v[{R(n)}:{R(n)+3}], v14, s[16:19], s58 offen sc1" for n in range(8)]
    for l in ld: g(l)
    if late > opt["asig"]:
        g("s_waitcnt vmcnt(8)")
        for c in range(ge + 1 + opt["asig"], 15): g.fset(F_LAND + c)
    def cons(n):
        r = R(n)
        g(f"v_perm_b32 v17, v{r+1}, v{r}, s8")
        g(f"v_lshl_or_b32 v{(60, 17)[n > 0]}, v{r+2}, 24, v17")
        g(f"v_xor_b32 v16, s28, v{r+3}" if n == 0 else f"v_bitop3_b32 v16, v16, v{r+3}, v64 bitop3:0xf6")
        for i in range(4): g(f"v_and_or_b32 v{(56, 70)[n > 0]+i}, v{r+i}, s9, v15")
        if n > 0:
            for i in range(4): g(f"v_add_f32 v{56+i}, v{56+i}, v{70+i}")
            g("v_add_f32 v60, v60, v17")
    gather(g, ld, lambda n: g(f"v_cmp_ne_u32_sdwa vcc, v{R(n)+3}, v64 src0_sel:BYTE_0 src1_sel:BYTE_0"), cons, lambda: g("v_and_b32 v16, 0xff, v16\nv_cmp_ne_u32 vcc, 0, v16"))
    g.retries("rP")
    g("v_mov_b32 v61, v60\nv_permlane32_swap_b32 v56, v57\nv_permlane32_swap_b32 v58, v59\nv_permlane32_swap_b32 v60, v61")
    g("v_add_f32 v60, v60, v61\nv_add_f32 v56, v56, v57\nv_add_f32 v58, v58, v59\nv_mov_b32 v61, v60")
    g("v_permlane16_swap_b32 v56, v58\nv_permlane16_swap_b32 v60, v61\nv_add_f32 v56, v56, v58\nv_add_f32 v60, v60, v61")
    g("v_cvt_pk_bf16_f32 v65, v60, 0\nv_permlane32_swap_b32 v56, v57\nv_mov_b32 v68, v65\nv_cvt_pk_bf16_f32 v66, v56, v57\nv_permlane16_swap_b32 v66, v67\ns_mov_b64 exec, 0xffff")
    g("s_cmp_lg_u32 s69, 0\ns_cbranch_scc1 L_fodd\nbuffer_store_dwordx4 v[64:67], v14, s[16:19], s68 offen sc1\ns_branch L_fdone\nL_fodd:\nbuffer_store_dwordx4 v[66:69], v14, s[16:19], s68 offen sc1\nL_fdone:\ns_mov_b64 exec, -1")
    g.stamp(5, "fp")
    g("s_branch L_aux")

    g.slow = g.slow[::-1] + held; g.flush_slow()
    g("L_E_B:")

    WO, BA, OB = 24, 184, 216
    g(f"v_bfe_u32 v14, v{vL}, 2, 2\nv_and_b32 v16, 3, v{vL}")
    g(f"v_and_b32 v15, 1, v{vQ}\nv_lshl_add_u32 v15, v15, 2, v16\nv_and_b32 v17, 1, v15\nv_lshrrev_b32 v15, 1, v15\nv_lshl_add_u32 v15, v17, 2, v15")
    g(f"v_xor_b32 v17, s6, v14\nv_lshlrev_b32 v17, 6, v17\nv_lshl_add_u32 v15, v15, 3, v17\nv_lshl_add_u32 v15, v14, 8, v15\nv_lshrrev_b32 v16, 5, v{vL}")
    g(f"v_lshl_add_u32 v5, v16, 11, v15\nv_add_u32 v6, {3*SLOT}, v5\nv_mul_u32_u24 v16, {40*256}, v16\nv_add_u32 v7, v15, v16\nv_add_u32 v8, {3*SLOT}, v7")
    g(f"v_add_u32 v18, {6*SLOT}, v5\nv_add_u32 v19, {6*SLOT}, v7")
    def wo_rd(c, st):
        b, base = divmod(S[WSL[c]], 3*SLOT); r = WO + 20*c + 4*st
        if st < 4: return tr2(r, (5, 6, 18)[b], base + 5120*st, base + 5120*st + 1024)
        return tr2(r, (7, 8, 19)[b], base + 4096, base + 4096 + 5120)
    def wo_read(*cs):
        lg = Lgkm(g)
        for c in cs:
            for st in range(5): lg.op(wo_rd(c, st))
        g("s_waitcnt lgkmcnt(8)")
    def wo_dma(c):
        for p in wo_pieces(c, 9): cend[20 + c] = vm.op(p)
    g.fwait(F_PK, 14)
    vm.wait(pst)
    lands = list(range(ge + 1, 15))
    def sigs(when):
        for c in list(lands):
            if 14 - c + when + opt["wl"] >= 2: vm.wait(cend[c]); g.fset(F_LAND + c); lands.remove(c)
    sigs(0); g.lite("wo0"); wo_dma(1); sigs(1); wo_dma(0); sigs(2)
    g.fwait(F_REL + 11, 14)
    for c in (2, 3, 4):
        if opt["wpause"] == c: g.fwait(F_PQ, 14)
        elif c == 4 and not opt["wpause"]: g.fwait(F_REL + 13, 14)
        wo_dma(c)
    g.page()
    vm.wait(cend[24]); g.fset(F_WL); g.fwait(F_WL, 14); g.lite("wl")
    if opt["wpq"]: g.fwait(F_PQ, 14)
    wo_read(1, 0, 2, 3, 4)
    g.fset(F_WOR)
    g(f"v_lshlrev_b32 v10, 4, v{vL}\ns_lshl_b32 s58, s6, 10\ns_add_u32 s58, s58, {L_SP}\nv_add_u32 v4, s58, v10\nv_add_u32 v10, {S_O}, v10\nv_add_u32 v11, {S_O2-S_O}, v10")
    g(f"v_and_b32 v14, 31, v{vL}\nv_lshrrev_b32 v15, 5, v{vL}\nv_lshlrev_b32 v14, 3, v14\nv_lshl_add_u32 v16, v15, 10, v14\nv_add_u32 v16, {S_O}, v16\nv_add_u32 v17, {S_O2-S_O}, v16")
    SH = opt["sh"]
    if SH: g(f"s_lshl3_add_u32 s60, s3, s0\ns_lshl_b32 s60, s60, 7\ns_add_u32 s60, s60, {OFF_HS+12}\ns_cmp_eq_u32 s6, 0\ns_cselect_b32 s60, s60, 0x7ff00000\nv_mov_b32 v20, s28\nv_lshlrev_b32 v21, 24, v{vL}")
    g.stamp(5)
    NF = 80; D = 3; HB = 24; TM = opt["tm"]
    seq = [(ks, tau) for ks in range(40 - TM) for tau in range(2)] + [(ks, tau) for tau in range(2) for ks in range(40 - TM, 40)]
    lg = Lgkm(g); idx = {}; pend = {}; checked = set()
    first = {}
    for f, (ks, tau) in enumerate(seq): first.setdefault(ks // 5, f)
    def ord_(f):
        ks, tau = seq[f]; pr, st = divmod(ks, 5)
        if f == 0: g.fwait(F_OS, 14)
        elif first[pr] == f:
            g.fcheck(F_OS + pr, 14, False)
        base = (pr % 4) * 10240; r = OB + 4 * (f % 4)
        if st < 4: idx[f] = lg.op(f"ds_read_b128 v[{r}:{r+3}], v{10 + pr//4} offset:{base + (2*st+tau)*1024}")
        else: idx[f] = lg.op(f"ds_read_b64 v[{r}:{r+1}], v{16 + pr//4} offset:{base + 8192 + 256*tau}\nds_read_b64 v[{r+2}:{r+3}], v{16 + pr//4} offset:{base + 8192 + 512 + 256*tau}")
    def epi(tau, pk):
        a = BA + 16*tau; xr = 56 + 16*tau; out = []
        for q in range(16): out.append(f"v_cvt_pk_bf16_f32 v{a+q}, 0, v{a+q}")
        if pk: out += [f"v_pk_add_f32 v[{a+2*q}:{a+2*q+1}], v[{a+2*q}:{a+2*q+1}], v[{xr+2*q}:{xr+2*q+1}]" for q in range(8)]
        else: out += [f"v_add_f32 v{a+q}, v{a+q}, v{xr+q}" for q in range(16)]
        return out + [cvt(HB+8*tau+q, a+2*q) for q in range(8)]
    e0 = epi(0, TM == 0)
    for f in range(D): ord_(f)
    for f in range(NF):
        lg.wait(idx[f])
        for pr in range(1, 8):
            if first[pr] - 3 == f: assert pend[pr] <= lg.done; g.fcmp(14)
        ks, tau = seq[f]
        g(mfma32(BA + 16*tau, WO + 4*ks, OB + 4*(f % 4), ks == 0))
        for pr in range(1, 8):
            if first[pr] - 6 == f: pend[pr] = lg.op(g.fget_t(F_OS + pr, 14))
        if f + D < NF: ord_(f + D)
        for c, w in zip((5, 6, 7), opt["wat"]):
            f0 = max(10*w - 2, 10*c - 38)
            if f0 <= f < f0 + 10 and f % 2 == 0: lg.op(wo_rd(c, (f - f0) // 2))
        if 42 <= f < 58: g(f"v_lshlrev_b32 v{56+2*(f-42)}, 16, v{XR+f-42}\nv_and_b32 v{57+2*(f-42)}, s31, v{XR+f-42}")
        if 58 <= f < 64: g(f"v_mov_b32 v{44+f-58}, 0")
        if TM and f >= NF - TM + 1:
            for _ in range(6 if f < NF - 1 else len(e0)):
                if e0: g(e0.pop(0))
        if SH and f == SH: g("buffer_store_dword v20, v21, s[16:19], s60 offen sc1")
        g.lite(f"b{f}")
    g.stamp(10)
    def stats(tau):
        for q in range(8):
            r = HB + 8*tau + q
            g(f"v_dot2c_f32_bf16 v{44+3*tau}, s66, v{r}\nv_dot2c_f32_bf16 v{45+3*tau}, v{r}, v{r}\nv_dot2c_f32_bf16 v{46+3*tau}, v{WRR+q}, v{r}")
    for l in e0: g(l)
    stats(0)
    for l in epi(1, True): g(l)
    stats(1)
    for i in range(3): g(f"v_permlane32_swap_b32 v{44+i}, v{47+i}")
    for i in range(3): g(f"v_add_f32 v{44+i}, v{44+i}, v{47+i}")
    g("ds_write_b96 v4, v[44:46]\ns_waitcnt lgkmcnt(0)\ns_setprio 0\ns_barrier")
    g(f"v_and_b32 v14, 31, v{vL}\nv_lshrrev_b32 v15, 5, v{vL}\ns_lshl_b32 s58, s6, 2\nv_lshl_add_u32 v15, v15, 1, s58\nv_and_b32 v16, 7, v{vL}\nv_xor_b32 v15, v15, v16")
    g(f"v_lshlrev_b32 v15, 4, v15\nv_lshl_add_u32 v14, v14, 8, v15\nv_add_u32 v14, {S_HT}, v14\nv_xor_b32 v15, 16, v14")
    for tau in range(2):
        g(f"ds_write_b128 v14, v[{HB+8*tau}:{HB+8*tau+3}] offset:{8192*tau}\nds_write_b128 v15, v[{HB+8*tau+4}:{HB+8*tau+7}] offset:{8192*tau}")
    g("s_waitcnt lgkmcnt(0)\ns_branch L_B_join")
    g.flush_slow()

    g.page(False)
    g("L_G_aux:")
    g("v_mov_b32 v254, 0")
    for k in range(5): g(f"v_dot2c_f32_bf16 v254, v{vW5+k}, v{vW5+k}")
    wave_sum(g, [254], 18)
    g(f"v_sqrt_f32 v254, v254\nv_mul_f32 v254, {opt.get('band', '0x3c800000')}, v254")
    g("L_aux:\ns_cmp_ge_u32 s70, 48\ns_cbranch_scc1 L_red")
    g.srd(20, 44, 640*3072); g.srd(24, 46, 640*3072); g.srd(8, 48, 1536*1280)
    g(f"v_lshrrev_b32 v14, 2, v{vL}\nv_mul_u32_u24 v14, 3072, v14\nv_and_b32 v15, 3, v{vL}\nv_lshl_add_u32 v4, v15, 4, v14\nv_lshlrev_b32 v5, 4, v{vL}")
    g("s_lshl_b32 s67, s70, 6\ns_and_b32 s69, s70, 1\ns_lshl_b32 s69, s69, 4\ns_or_b32 s69, s69, s5\ns_mul_i32 s62, s5, 5120\ns_mul_i32 s68, s70, 40960\ns_add_u32 s68, s68, s62")
    g("s_cmp_lt_u32 s5, 4\ns_cbranch_scc1 L_noyp\nv_mov_b32 v24, -1\nv_mov_b32 v25, -1\nv_mov_b32 v26, -1\nv_mov_b32 v27, -1")
    g(f"s_mul_i32 s58, s6, {40*3072}\ns_add_u32 s58, s58, s67\ns_add_u32 s58, s58, {OFF_Y}")
    for d in (16, 8, 0): g(f"buffer_store_dwordx4 v[24:27], v4, s[16:19], s58 offen sc1\ns_add_u32 s58, s58, {d*3072}")
    g(f"L_noyp:\nv_lshrrev_b32 v16, 5, v{vL}\nv_lshlrev_b32 v16, 5, v16\nv_xor_b32 v4, v4, v16")
    S_U, S_D = S[2] + 16, S[4] + 32
    if opt["fack"]: g("s_waitcnt vmcnt(0)")
    g("s_barrier\ns_setprio 0")
    for i in range(5):
        g(f"s_xor_b32 s59, s69, {8*i}" if i < 4 else "s_add_u32 s59, s5, 32")
        g(f"s_mul_i32 s58, s59, {16*3072}\ns_add_u32 s58, s58, s67\ns_lshl_b32 s59, s59, 10\ns_add_u32 m0, s59, {S[0]}\nbuffer_load_dwordx4 v4, s[20:23], s58 offen lds")
        g(f"s_add_u32 m0, s59, {S_U}\nbuffer_load_dwordx4 v4, s[24:27], s58 offen lds")
    for i in range(5):
        g(f"v_add_u32 v16, {64*i}, v{vL}\nv_mul_u32_u24 v17, 820, v16\nv_lshrrev_b32 v17, 16, v17\nv_lshlrev_b32 v17, 2, v17\nv_xor_b32 v16, v16, v17\nv_lshlrev_b32 v16, 4, v16")
        g(f"s_add_u32 m0, s62, {S_D+1024*i}\nbuffer_load_dwordx4 v16, s[8:11], s68 offen lds")
    g("s_waitcnt vmcnt(0)\ns_barrier")
    g("s_cmp_ge_u32 s5, 4\ns_cbranch_scc1 L_ffn_end")
    GU, WD = 120, 200
    g(f"v_bfe_u32 v14, v{vL}, 2, 2\nv_lshl_add_u32 v16, v{vQ}, 3, v14\nv_lshlrev_b32 v6, 6, v16\nv_and_b32 v17, 1, v15\nv_mul_u32_u24 v17, {S_U}, v17\nv_lshrrev_b32 v18, 1, v15")
    g("v_lshlrev_b32 v18, 3, v18\nv_add3_u32 v6, v6, v17, v18")
    g(f"v_and_b32 v17, 1, v{vQ}\nv_lshlrev_b32 v17, 1, v17\nv_xor_b32 v17, s6, v17\nv_lshl_add_u32 v6, v17, 4, v6")
    g(f"v_mul_u32_u24 v16, 1280, v16\nv_lshl_add_u32 v16, v15, 4, v16\nv_xor_b32 v17, s6, v14\nv_lshl_add_u32 v16, v17, 6, v16\nv_add_u32 v7, {S_D}, v16")
    lg = Lgkm(g)
    for n in range(20): lg.op(tr2(GU + 4*n, 6, 2048*n, 2048*n + 256))
    for i in range(5):
        for m in range(2): lg.op(tr2(WD + 8*i + 4*m, 7, 256*i + 8*m, 256*i + 8*m + 5120))
    XSP = 1312
    g(f"v_and_b32 v14, 7, v{vL}\nv_mul_u32_u24 v15, {XSP}, v14\nv_lshl_add_u32 v15, v{vQ}, 4, v15\nv_add_u32 v8, {S[6]+64}, v15")
    g(f"v_lshrrev_b32 v15, 5, v{vL}\nv_lshlrev_b32 v15, 3, v15\nv_lshl_add_u32 v15, v14, 4, v15\ns_lshl_b32 s58, s6, 7\ns_add_u32 s58, s58, {M_VX}\nv_add_u32 v9, s58, v15")
    g(f"v_lshlrev_b32 v15, 7, v{vQ}\nv_lshl_add_u32 v15, v14, 4, v15\nv_add_u32 v10, {M_VX}, v15")
    g(f"v_bfe_u32 v15, v{vL}, 2, 1\nv_lshl_add_u32 v15, v{vQ}, 1, v15\nv_mul_u32_u24 v15, 3072, v15\nv_and_b32 v16, 3, v{vL}\nv_lshl_add_u32 v11, v16, 4, v15")
    g(f"s_mul_i32 s58, s6, {8*3072}\ns_add_u32 s67, s67, s58\ns_add_u32 s67, s67, {OFF_Y}")
    for i in range(5): g(f"s_add_u32 s{40+i}, s67, {32*3072*i}")
    g("s_mov_b32 s72, 0x00ff00ff\ns_mov_b32 s73, 0x00ff00ff\ns_mov_b32 s74, 0xff\ns_mov_b32 s75, 0xff")
    g(f"s_mul_i32 s58, s6, {2*XSP}\ns_add_u32 s58, s58, {S[6]+64}\nv_add_u32 v20, s58, v5\nv_mul_u32_u24 v15, {XSP}, v{vQ}\nv_lshl_add_u32 v21, v{vJ}, 4, v15\nv_add_u32 v21, s58, v21")
    g(f"s_lshl_b32 s60, s6, 1\ns_add_u32 s61, s60, 1\nv_cmp_eq_u32 s[62:63], 0, v{vQ}\nv_lshlrev_b32 v22, 4, v{vJ}\nv_mov_b32 v23, {OFF_CN}\ns_movk_i32 s71, 1280")
    g(f"s_lshl_b32 s56, s70, 7\ns_add_u32 s56, s56, {OFF_HY+12}\ns_cmp_eq_u32 s6, 0\ns_cselect_b32 s56, s56, 0x7ff00000\nv_mov_b32 v18, s28")
    if opt["hp"]: g("s_mov_b64 exec, 1\nbuffer_load_dword v19, v5, s[16:19], s56 offen sc1\ns_mov_b64 exec, -1")
    g("s_waitcnt lgkmcnt(0)")
    g.stamp(9, "fw")
    key_wait(g)
    Lm, x = key_merge(g)
    g.stamp(11, "ks")
    g(f"v_not_b32 v15, v{x}\nv_bfe_u32 v15, v15, 9, 5\nv_and_b32 v16, 7, v{x}\nv_lshl_add_u32 v15, v15, 3, v16\nv_mad_u32_u24 v15, v15, s71, v23")
    g("v_readlane_b32 s68, v15, s60\nv_readlane_b32 s69, v15, s61\nv_add_u32 v16, s69, v22\nv_add_u32 v17, s68, v22\nv_cndmask_b32 v16, v16, v17, s[62:63]")
    ld = ["buffer_load_dwordx4 v[108:111], v5, s[16:19], s68 offen sc1", "buffer_load_dwordx4 v[112:115], v5, s[16:19], s69 offen sc1", "buffer_load_dwordx4 v[116:119], v16, s[16:19], 0 offen offset:1024 sc1"]
    for l in ld: g(l)
    key_refine(g, Lm, x)
    if opt["yh"] == 2: g("s_mov_b64 exec, 1\nbuffer_store_dword v18, v5, s[16:19], s56 offen sc1"); g("s_mov_b64 exec, -1")
    gather(g, ld, lambda n: g(f"v_cmp_eq_u32 vcc, -1, v{111+4*n}"), NOP, lambda: g("v_max3_u32 v17, v111, v115, v119\nv_cmp_eq_u32 vcc, -1, v17"), waits=[int(opt["yh"] == 2), None, None])
    if opt["yh"] == 1: g("s_mov_b64 exec, 1\nbuffer_store_dword v18, v5, s[16:19], s56 offen sc1"); g("s_mov_b64 exec, -1")
    g.retries("rrow")
    g(f"ds_write_b128 v20, v[108:111]\nds_write_b128 v20, v[112:115] offset:{XSP}\ns_mov_b32 exec_hi, 0\nds_write_b128 v21, v[116:119] offset:1024")
    if opt["yh"] == 0: g("s_mov_b64 exec, 1\nbuffer_store_dword v18, v5, s[16:19], s56 offen sc1")
    g("s_mov_b64 exec, -1\ns_waitcnt lgkmcnt(0)")
    g.stamp(12, "rows")
    g("s_barrier")
    lg = Lgkm(g); xi = {}
    def xrd(n): xi[n] = lg.op(f"ds_read_b128 v[{24+4*n}:{27+4*n}], v8 offset:{64*n}")
    for n in range(8): xrd(n)
    if opt["yh"] == -1: g("s_mov_b64 exec, 1\nbuffer_store_dword v18, v5, s[16:19], s56 offen sc1"); g("s_mov_b64 exec, -1")
    for n in range(20):
        if n % 2 == 0: lg.wait(xi[n + 1])
        g(mfma16(104, GU + 4*n, 24 + 4*n, n == 0))
        if n + 8 < 20: xrd(n + 8)
    if opt["yh"] == -2: g("s_mov_b64 exec, 1\nbuffer_store_dword v18, v5, s[16:19], s56 offen sc1"); g("s_mov_b64 exec, -1")
    for q in range(4): g(f"v_mul_f32 v{112+q}, s64, v{104+q}")
    for q in range(4): g(f"v_exp_f32_e64 v{112+q}, -v{112+q}")
    for q in range(4): g(f"v_permlane16_swap_b32 v{104+q}, v{108+q}")
    for q in range(4): g(f"v_add_f32 v{112+q}, 1.0, v{112+q}")
    for q in range(4): g(f"v_rcp_f32 v{112+q}, v{112+q}")
    for q in (0, 2): g(f"v_pk_mul_f32 v[{104+q}:{105+q}], v[{104+q}:{105+q}], v[{108+q}:{109+q}]")
    for q in (0, 2): g(f"v_pk_mul_f32 v[{104+q}:{105+q}], v[{104+q}:{105+q}], v[{112+q}:{113+q}]")
    g(cvt(108, 104) + "\n" + cvt(109, 106) + "\ns_mov_b64 exec, s[74:75]\nds_write_b64 v9, v[108:109]\ns_mov_b64 exec, -1")
    g("s_waitcnt lgkmcnt(0)\ns_barrier\nds_read_b128 v[100:103], v10\ns_waitcnt lgkmcnt(0)")
    def yput(i):
        for q in range(4): g(cvt(64+4*i+q, 24+8*i+2*q))
        g(f"buffer_store_dwordx4 v[{64+4*i}:{67+4*i}], v11, s[16:19], s{40+i} offen sc1")
    for i in range(10): g(mfma16(24 + 4*i, WD + 4*i, 100, True))
    g("s_mov_b64 exec, s[72:73]")
    for i in range(5): yput(i)
    g("L_ffn_end:\ns_mov_b64 exec, -1")
    g.stamp(13, "yp")
    g.end()
    held = [g.slow.pop(1)]
    g.flush_slow()
    g.page(False)

    g("L_red:\ns_cmp_ge_u32 s5, 4\ns_cbranch_scc1 L_red_end")
    g("s_sub_u32 s56, s1, 6\ns_lshl2_add_u32 s56, s56, s6\ns_and_b32 s57, s2, 7")
    if opt["pc2"]:
        g(f"s_getpc_b64 s[20:21]\nL_pc2:\ns_sub_u32 s20, s20, L_pc2-{KN}\ns_subb_u32 s21, s21, 0\ns_and_b32 s21, s21, 0xffff\ns_mov_b32 s22, L_codeend-{KN}\ns_mov_b32 s23, 0x20000")
        g(f"s_mul_i32 s58, s56, 2304\nv_lshlrev_b32 v14, 7, v{vL}\ns_mov_b64 exec, 0x3ffff\nbuffer_load_dword v229, v14, s[20:23], s58 offen\ns_mov_b64 exec, -1")
    g.srd(20, 44, 640*3072); g.srd(24, 46, 640*3072); g.srd(8, 48, 1536*1280)
    if opt["help"] == 0: g("s_branch L_nohelp")
    if opt["help"] == 2: g("s_waitcnt vmcnt(0)")
    g(f"v_mul_u32_u24 v14, 21846, v{vL}\nv_lshrrev_b32 v14, 16, v14\nv_mul_u32_u24 v15, {3072-384}, v14\nv_lshlrev_b32 v14, 7, v{vL}\nv_add_u32 v15, v15, v14")
    g(f"s_mul_i32 s58, s56, {7*3072}\ns_mul_i32 s59, s57, 384\ns_add_u32 s58, s58, s59\ns_add_u32 s58, s58, {472*3072}\ns_mov_b64 exec, 0x1fffff")
    g("buffer_load_dword v230, v15, s[20:23], s58 offen\nbuffer_load_dword v231, v15, s[24:27], s58 offen\ns_mov_b64 exec, -1")
    g("s_mul_i32 s58, s56, 10240\ns_mul_i32 s59, s57, 245760\ns_add_u32 s58, s58, s59\nbuffer_load_dword v232, v14, s[8:11], s58 offen")
    g("s_add_u32 s58, s58, 8192\ns_mov_b64 exec, 0xffff\nbuffer_load_dword v233, v14, s[8:11], s58 offen\ns_mov_b64 exec, -1")
    g("L_nohelp:\ns_cmp_ge_u32 s70, 88\ns_cbranch_scc1 L_red_end\ns_sub_u32 s70, s70, 48")
    g.srd(24, 50, 2048*1280)
    g(f"v_and_b32 v14, 1, v{vL}\nv_lshlrev_b32 v14, 4, v14\nv_mov_b32 v15, 0x3f80\nv_lshlrev_b32 v15, v14, v15\nv_bfe_u32 v14, v{vL}, 1, 2")
    for q in range(4): g(f"v_cmp_eq_u32 vcc, {q}, v14\nv_cndmask_b32 v{20+q}, 0, v15, vcc")
    g(f"v_and_b32 v16, 1, v{vQ}\nv_lshlrev_b32 v4, 3, v16\nv_lshlrev_b32 v5, 4, v{vL}\nv_lshlrev_b32 v8, 7, v{vL}")
    g(f"s_lshr_b32 s58, s6, 1\ns_lshl1_add_u32 s67, s70, s58\ns_lshl_b32 s67, s67, 4\ns_add_u32 s68, s67, {OFF_CN}\ns_add_u32 s69, s67, {OFF_CH}")
    g(f"s_lshl2_add_u32 s72, s70, s6\ns_mul_i32 s72, s72, 3072\ns_add_u32 s72, s72, {OFF_Y}\ns_mov_b32 s73, {OFF_HY+12}")
    g("s_and_b32 s58, s6, 1\ns_lshl_b32 s58, s58, 2\ns_lshl_b32 s36, 0x000f000f, s58\ns_mov_b32 s37, 0\ns_mov_b32 s38, -1\ns_mov_b32 s39, 0xffff")
    def hwait():
        ld = ["buffer_load_dword v17, v8, s[16:19], s73 offen sc1"]
        g("s_mov_b64 exec, s[38:39]"); g(ld[0])
        gather(g, ld, NOP, NOP, lambda: g("v_cmp_ne_u32 vcc, s28, v17"), full="s[38:39]", tight=opt["tight"] & 4)
        g("s_mov_b64 exec, -1")
    key_wait(g)
    Lm, x = key_merge(g)
    key_refine(g, Lm, x)
    g.stamp(11)
    g(f"v_not_b32 v15, v{x}\nv_bfe_u32 v15, v15, 3, 11\nv_mul_u32_u24 v6, 1280, v15\nv_add_u32 v6, v6, v4")
    g(f"v_lshrrev_b32 v15, 6, v15\nv_and_b32 v16, 7, v{x}\nv_lshl_add_u32 v15, v15, 3, v16\nv_mul_u32_u24 v15, 1280, v15\nv_add_u32 v7, v15, v4")
    from_key(g, 15, x, 16)
    g.rnd(15, 15)
    g("v_mul_f32 v15, s64, v15\nv_exp_f32_e64 v15, -v15\nv_add_f32 v15, 1.0, v15\nv_rcp_f32 v15, v15")
    g.rnd(10, 15)
    ld = ["buffer_load_dwordx2 v[80:81], v7, s[16:19], s68 offen sc1\nbuffer_load_dwordx2 v[82:83], v7, s[16:19], s69 offen sc1"]
    g("s_mov_b64 exec, s[36:37]"); g(ld[0])
    gather(g, ld, NOP, NOP, lambda: g("v_max_u32 v17, v81, v83\nv_cmp_eq_u32 vcc, -1, v17"), full="s[36:37]")
    for q in range(2):
        g(f"v_lshlrev_b32 v{86+2*q}, 16, v{80+q}\nv_and_b32 v{87+2*q}, s31, v{80+q}\nv_lshlrev_b32 v{90+2*q}, 16, v{82+q}\nv_and_b32 v{91+2*q}, s31, v{82+q}")
    g.stamp(12)
    hwait()
    ld = [f"buffer_load_dwordx4 v[{24+4*n}:{27+4*n}], v5, s[16:19], s72 offen offset:{1024*n} sc1" for n in range(3)]
    for l in ld: g(l)
    gather(g, ld, lambda n: g(f"v_cmp_eq_u32 vcc, -1, v{27+4*n}"), lambda n: g(mfma16(72, 20, 24 + 4*n, n == 0)), lambda: g("v_max3_u32 v17, v27, v31, v35\nv_cmp_eq_u32 vcc, -1, v17"), tight=opt["tight"] & 8)
    g.retries("rY")
    for sh in (4, 8):
        for q in range(4): g(f"v_add_f32_dpp v{72+q}, v{72+q}, v{72+q} row_ror:{sh} {DPPM}")
    for q in (0, 2): g(f"v_pk_fma_f32 v[{72+q}:{73+q}], v[{72+q}:{73+q}], v[10:11], v[{86+q}:{87+q}] op_sel_hi:[1,0,1]")
    for q in range(4): g.rnd(72+q, 72+q)
    for q in (0, 2): g(f"v_pk_add_f32 v[{72+q}:{73+q}], v[{72+q}:{73+q}], v[{90+q}:{91+q}]")
    g(cvt(76, 72) + "\n" + cvt(77, 74) + "\ns_mov_b64 exec, s[36:37]\nbuffer_store_dwordx2 v[76:77], v6, s[24:27], s67 offen sc1")
    g("s_or_b32 s70, s70, s6\ns_cbranch_scc1 L_red_end\ns_mov_b64 exec, 1\nv_mov_b32 v17, s28\nbuffer_store_dword v17, v5, s[16:19], 0 offen offset:12 sc1")
    g("L_red_end:\ns_mov_b64 exec, -1")
    g.stamp(13)
    g.end()
    g.slow.append(g.slow.pop(1)); g.slow += held
    g.flush_slow()

    if opt.get("stamps"):
        g("L_stamps:\ns_waitcnt vmcnt(0)\ns_memrealtime s[98:99]\ns_memtime s[92:93]\ns_waitcnt lgkmcnt(0)\ns_sub_u32 s92, s92, s94\ns_getreg_b32 s93, hwreg(HW_REG_HW_ID)\ns_mov_b32 s91, s98\ns_mov_b32 s76, s96")
        if opt.get("padwg") is not None:
            m, v = opt["padwg"]
            g(f"s_and_b32 s58, s2, {m}\ns_cmp_lg_u32 s58, {v}\ns_cbranch_scc1 L_pe\nL_pad:\ns_memrealtime s[98:99]\ns_waitcnt lgkmcnt(0)\ns_sub_u32 s98, s98, s76\ns_cmp_lt_u32 s98, 3000\ns_cbranch_scc1 L_pad\nL_pe:\ns_endpgm")
        g(f"s_add_u32 s54, s54, {OFF_STAMP}\ns_addc_u32 s55, s55, 0")
        g.srd(16, 54, 1 << 20)
        g("s_lshl_b32 s58, s2, 3\ns_add_u32 s58, s58, s5\ns_lshl_b32 s58, s58, 7\nv_mov_b32 v4, 0\ns_mov_b64 exec, 1")
        if opt.get("lite"):
            for i in range(7): g(f"s_sub_u32 s59, s{78+2*i}, s94\nv_mov_b32 v5, s59\nbuffer_store_dword v5, v4, s[16:19], s58 offen offset:{4*i}")
            g("v_mov_b32 v5, s0\nbuffer_store_dword v5, v4, s[16:19], s58 offen offset:28\ns_endpgm")
        else:
            for i in range(16): g(f"v_mov_b32 v5, s{76+i}\nbuffer_store_dword v5, v4, s[16:19], s58 offen offset:{4*i}")
            for i, r in enumerate((1, 0, 92, 93)): g(f"v_mov_b32 v5, s{r}\nbuffer_store_dword v5, v4, s[16:19], s58 offen offset:{64+4*i}")
            g(f"v_writelane_b32 v{STV}, s92, 15\ns_mov_b64 exec, 0xffff\nv_lshlrev_b32 v4, 2, v{vL}\ns_add_u32 s58, s58, {1<<19}\nbuffer_store_dword v{STV}, v4, s[16:19], s58 offen\ns_endpgm")
    g("L_codeend:")
    lines, nn = hazard.fix(g.lines, verbose=opt.get("verbose"))
    lines, npro, npad = align.fix(lines, KN)
    hdr = "" if opt.get("nohdr") else open("cdna_kernels/" + NAME + ".s.ref").read().split("; Override launch")[0]
    return wrap("\n".join(lines), 256, 512, 163840, vgpr=256, accum=256, sgpr=102, header=hdr), (nn, npro, npad)

DEFAULT = dict(late=2, gap=13, oahead=(1, 2), tm=5, l0=1, vk=1, pc2=1, pages=1, j1=3, j2=52, sm=0, fpre=0, kc=2, wpq=1, fack=0, wat=(1, 1, 1), tight=0, wl=2, wpause=0, asig=0, help=2, yh=1, sh=0, sp=4, kh=0, hp=0)
STR_OPTS = ("band",)
def parse(kvs):
    opt = dict(DEFAULT)
    for kv in kvs:
        if "=" in kv:
            k, v = kv.split("="); opt[k] = v if k in STR_OPTS else eval(v)
    return opt
if __name__ == "__main__":
    txt, nn = build(parse(sys.argv[2:]))
    open(sys.argv[1], "w").write(txt)
    print("nops/promoted/padded:", nn, "lines:", txt.count("\n"))
```
